```python
import torch

def _softmax(x, axis=-1):
    return torch.softmax(x, dim=axis)
def _gelu(x):
    return torch.nn.functional.gelu(x, approximate="tanh")
def _silu(x):
    return torch.nn.functional.silu(x)
def _sigmoid(x):
    return torch.sigmoid(x)
def _layernorm(x, axis=-1, eps=1e-5):
    m = x.mean(dim=axis, keepdim=True)
    v = x.var(dim=axis, keepdim=True, unbiased=False)
    return (x - m) / torch.sqrt(v + eps)
def _scatter_add(tgt, idx, src, axis=0):
    return tgt.clone().index_add_(axis, idx, src)
def _segment_sum(src, seg, n):
    out = torch.zeros((n,) + src.shape[1:], dtype=src.dtype)
    return out.index_add_(0, seg, src)
def _pad(x, pw):
    flat = tuple(v for pair in reversed(pw) for v in pair)
    return torch.nn.functional.pad(x, flat)

kernel_name = 'recurrent_scan__ssm_conv_h3__glu_gated_swiglu__prompt'

def setup_inputs():

    _w = (lambda a: (lambda t: t.to(torch.bfloat16) if t.is_floating_point() else t)(torch.as_tensor(a)))
    def _A_setup():
        B, S, D = 1, 2048, 448
        ks = 4
        return {
            "q": _w((lambda *s: torch.randn(*s, dtype=torch.bfloat16) * 0.05)(B, S, D)),
            "k": _w((lambda *s: torch.randn(*s, dtype=torch.bfloat16) * 0.8)(B, S, D)),
            "v": _w((lambda *s: torch.randn(*s, dtype=torch.bfloat16) * 0.8)(B, S, D)),
            "shift_k": _w((lambda *s: torch.randn(*s, dtype=torch.bfloat16) * 0.8)(D, ks) * 0.5),
            "ssm_k": _w((lambda *s: torch.randn(*s, dtype=torch.bfloat16) * 0.8)(D, S) * (1.0 / S ** 0.5)),
            "ssm_D": _w((lambda *s: torch.randn(*s, dtype=torch.bfloat16) * 0.8)(D)),
        }
    _A_in = _A_setup()

    def _B_setup():
        B, S, D, F = 1, 2048, 448, 1792
        return {
            "x": _w((lambda *s: torch.randn(*s, dtype=torch.bfloat16) * 0.05)(B, S, D)),
            "w1": _w((lambda *s: torch.randn(*s, dtype=torch.bfloat16) * 0.2)(D, F) * (2.0 / D) ** 0.5),
            "w3": _w((lambda *s: torch.randn(*s, dtype=torch.bfloat16) * 0.2)(D, F) * (2.0 / D) ** 0.5),
            "w2": _w((lambda *s: torch.randn(*s, dtype=torch.bfloat16) * 0.2)(F, D) * (2.0 / F) ** 0.5),
        }
    _B_in = _B_setup()

    return {
        "A_q": _A_in["q"],
        "A_k": _A_in["k"],
        "A_v": _A_in["v"],
        "A_shift_k": _A_in["shift_k"],
        "A_ssm_k": _A_in["ssm_k"],
        "A_ssm_D": _A_in["ssm_D"],
        "B_x": _B_in["x"],
        "B_w1": _B_in["w1"],
        "B_w3": _B_in["w3"],
        "B_w2": _B_in["w2"],
    }

def reference(A_q, A_k, A_v, A_shift_k, A_ssm_k, A_ssm_D, B_x, B_w1, B_w3, B_w2):
    def _A_ref(q, k, v, shift_k, ssm_k, ssm_D):
        B, S, D = q.shape
        ks = shift_k.shape[-1]
        k_pad = _pad(k, ((0, 0), (ks - 1, 0), (0, 0)))
        k_shift = torch.zeros_like(k)
        for t in range(ks):
            k_shift = k_shift + k_pad[:, t:t + S, :] * shift_k[:, ks - 1 - t][None, None, :]
        kv = k_shift * v
        L = 2 * S
        kv_pad = _pad(kv, ((0, 0), (0, S), (0, 0)))
        kf_pad = _pad(ssm_k, ((0, 0), (0, S)))
        kv_f = (lambda x, axes=(-2,-1): torch.fft.rfft2(x.float(), dim=axes))(kv_pad[:, None, :, :], axes=(1, 2))
        kf_f = (lambda x, axes=(-2,-1): torch.fft.rfft2(x.float(), dim=axes))(kf_pad[:, None, :], axes=(1, 2))
        kf_f = (lambda x, *d: x.permute(*d))(kf_f, 1, 2, 0)
        y_f = kv_f * kf_f[None, :, :, :]
        y = (lambda x, s, axes=(-2,-1): torch.fft.irfft2(x, s=s, dim=axes).to(torch.bfloat16))(y_f, (1, L), axes=(1, 2))[:, 0, :S, :]
        y = y + kv * ssm_D[None, None, :]
        return q * y

    def _B_ref(x, w1, w3, w2):
        gate = torch.einsum("bsd,df->bsf", x, w1)
        up = torch.einsum("bsd,df->bsf", x, w3)
        h = _silu(gate) * up
        out = torch.einsum("bsf,fd->bsd", h, w2)
        return out

    x = A_q
    xn = _layernorm(x, axis=-1)
    s = _A_ref(xn, A_k, A_v, A_shift_k, A_ssm_k, A_ssm_D)
    g = _silu(_B_ref(xn, B_w1, B_w3, B_w2))
    return x + s * g
```

```python
import sys

NAME = "recurrent_scan__ssm_conv_h3__glu_gated_swiglu__prompt"
S, D, F = 2048, 448, 1792
OPT = {}

WS_UR   = 0
WS_Y2   = 2 << 20
WS_H    = 4 << 20
WS_ST   = 12 << 20
WS_CS   = (12 << 20) + (64 << 10)
WS_F2   = 13 << 20
WS_F3   = (13 << 20) + (256 << 10)
WS_DBG  = 14 << 20
WS_SIZE = 16 << 20
SPIN_MAX = 200000

class Gen:
    def __init__(self):
        self.L = []
        self.vm = []
        self.lg = []
        self.lab = 0
    def e(self, s):
        for ln in s.strip("\n").split("\n"):
            self.L.append("    " + ln.strip())
    def label(self, s):
        self.L.append(s + ":")
    def newlab(self, p="L"):
        self.lab += 1
        return "%s_%d" % (p, self.lab)
    def c(self, s):
        self.L.append("    ; " + s)
    def vmem(self, s, tag):
        self.e(s); self.vm.append(tag)
    def wait_vm(self, tag):
        if tag not in self.vm: return
        idx = max(i for i, t in enumerate(self.vm) if t == tag)
        n = len(self.vm) - 1 - idx
        self.vm = self.vm[idx+1:]
        self.e("s_waitcnt vmcnt(%d)" % min(n, 63))
    def wait_vm_all(self):
        self.vm = []
        self.e("s_waitcnt vmcnt(0)")
    def ds(self, s, tag="x"):
        self.e(s); self.lg.append(tag)
    def wait_lg(self, tag):
        if tag not in self.lg: return
        idx = max(i for i, t in enumerate(self.lg) if t == tag)
        n = len(self.lg) - 1 - idx
        self.lg = self.lg[idx+1:]
        self.e("s_waitcnt lgkmcnt(%d)" % min(n, 15))
    def wait_lg_all(self):
        self.lg = []
        self.e("s_waitcnt lgkmcnt(0)")

def vr(a, n=1):
    return "v%d" % a if n == 1 else "v[%d:%d]" % (a, a+n-1)
def srd4(a):
    return "s[%d:%d]" % (a, a+3)

SRD_X, SRD_W, SRD_W2, SRD_WS, SRD_OUT, SRD_DBG, SRD_SSM, SRD_K, SRD_V, SRD_SK = 4, 8, 12, 16, 20, 24, 28, 32, 36, 40
sW      = 44
sRB, sFC, sSB, sDB, sM = 45, 46, 47, 48, 49
sSH, sFQ, sWQ, sCH = 50, 51, 52, 53
sONES   = 54
sXM0, sWM0 = 55, 56
sT0, sT1, sT2, sT3 = 57, 58, 59, 60
sDV     = 61
sVCC2   = 62
P_Q, P_K, P_V, P_SK, P_SSM, P_SD, P_BX, P_W1 = 64, 66, 68, 70, 72, 74, 76, 78
P_W3, P_W2, P_OUT, P_DBG, P_WS = 80, 82, 84, 86, 88
sH0, sH1 = 64, 65
sW2M0   = 66
sSPIN   = 67
sHL0, sHL1 = 68, 69
sTS     = 90

vLANE = 1
vXD, vWD = 16, 17
vXA = 18
vWA = 20
vL16 = 22
vFLG = 23
vW2D = 24
vW2A = 25
vFA, vGA = 27, 28
vTMP = 29
vFB = 32
vACC = 64
vW2 = 128
vCV = 240

SLOT = 24576
NSLOT = 6
LDS_TOTAL = 163840
CSTR = 4160
CV_CH = 4*CSTR + 4576
CV_UB = 4*CSTR
CV_PB = 98304
W2RING = 49152
G2_Y2 = 131072

def srd(g, base, ptr, nbytes):
    g.e("s_mov_b32 s%d, s%d\ns_and_b32 s%d, s%d, 0xffff\ns_mov_b32 s%d, %d\ns_mov_b32 s%d, 0x20000" %
        (base, ptr, base+1, ptr+1, base+2, nbytes, base+3))

def stamp(g, i, DEV):
    if DEV:
        g.e("s_memtime s[62:63]\ns_waitcnt lgkmcnt(0)")
        g.lg = []
        g.e("s_mov_b32 s%d, s62" % (sTS + i))

def rnd(g, d, s):
    g.e("v_cvt_pk_bf16_f32 v%d, 0, v%d" % (d, s))

def poll_slow(g, load, check):
    ok = g.newlab("L_OK"); lp = g.newlab("L_SPIN")
    check()
    g.e("s_cbranch_scc1 %s" % ok)
    g.e("s_mov_b32 s%d, 0" % sSPIN)
    g.label(lp)
    g.e("s_sleep 1")
    g.e(load)
    g.e("s_waitcnt vmcnt(0)")
    check()
    g.e("s_cbranch_scc1 %s" % ok)
    g.e("s_add_u32 s%d, s%d, 1\ns_cmp_lt_u32 s%d, %d\ns_cbranch_scc1 %s" % (sSPIN, sSPIN, sSPIN, SPIN_MAX, lp))
    g.label(ok)

def build(DEV=True):
    g = Gen()
    e = g.e
    g.label(NAME + "_kernel")
    e("s_cmp_ge_u32 s2, 256\ns_cbranch_scc1 L_END")
    e("s_load_dwordx16 s[64:79], s[0:1], 0\ns_load_dwordx8 s[80:87], s[0:1], 64\ns_load_dwordx2 s[88:89], s[0:1], 96")
    if DEV:
        e("s_memrealtime s[100:101]")
    e("v_and_b32 v%d, 63, v0\nv_lshrrev_b32 v2, 6, v0\ns_nop 0\nv_readfirstlane_b32 s%d, v2" % (vLANE, sW))
    e("s_mov_b32 s%d, 0x3f803f80" % sONES)
    e("s_cmp_lt_u32 s2, 32\ns_cbranch_scc1 L_SERVICE")
    main_wg(g, DEV)
    e("s_branch L_END")
    g.vm = []; g.lg = []
    g.label("L_SERVICE")
    service_wg(g, DEV)
    g.label("L_END")
    e("s_endpgm")
    return g

def main_wg(g, DEV):
    e = g.e
    e("s_sub_u32 s%d, s2, 32" % sM)
    e("s_and_b32 s%d, s%d, 7\ns_lshr_b32 s%d, s%d, 3" % (sT0, sM, sT1, sM))
    e("s_mul_i32 s%d, s%d, 37\ns_lshr_b32 s%d, s%d, 8" % (sT2, sT1, sT2, sT2))
    e("s_mul_i32 s%d, s%d, 7\ns_sub_u32 s%d, s%d, s%d" % (sT3, sT2, sDB, sT1, sT3))
    e("s_lshr_b32 s%d, s%d, 1\ns_lshl_b32 s%d, s%d, 2\ns_add_u32 s%d, s%d, s%d" % (sRB, sT0, sRB, sRB, sRB, sRB, sT2))
    e("s_and_b32 s%d, s%d, 1\ns_mul_i32 s%d, s%d, 7\ns_add_u32 s%d, s%d, s%d" % (sFC, sT0, sFC, sFC, sFC, sFC, sDB))
    e("s_lshl_b32 s%d, s%d, 2\ns_add_u32 s%d, s%d, s%d" % (sSB, sT0, sSB, sSB, sT2))
    e("s_and_b32 s%d, s%d, 1\ns_lshr_b32 s%d, s%d, 1" % (sSH, sW, sFQ, sW))
    e("v_lshrrev_b32 v2, 2, v1\nv_lshrrev_b32 v3, 4, v1\nv_xor_b32 v4, v1, v3\nv_and_b32 v4, 3, v4")
    e("s_lshl_b32 s%d, s%d, 7\ns_lshl_b32 s%d, s%d, 4\ns_add_u32 s%d, s%d, s%d" % (sT0, sRB, sT1, sW, sT0, sT0, sT1))
    e("v_add_u32 v2, s%d, v2\nv_mul_u32_u24 v2, 896, v2\nv_lshl_add_u32 v%d, v4, 4, v2" % (sT0, vXD))
    e("s_lshl_b32 s%d, s%d, 2\nv_or_b32 v4, s%d, v3" % (sT0, sSH, sT0))
    e("v_bfe_u32 v5, v1, 1, 3\nv_xor_b32 v5, v5, v4\nv_and_b32 v6, 1, v1\nv_lshl_or_b32 v5, v5, 1, v6")
    e("s_lshl_b32 s%d, s%d, 3\nv_add_u32 v6, s%d, v3\nv_mul_u32_u24 v6, 3584, v6" % (sT0, sFQ, sT0))
    e("s_lshl_b32 s%d, s%d, 8\nv_lshl_add_u32 v5, v5, 4, v6\nv_add_u32 v%d, s%d, v5" % (sT0, sFC, vWD, sT0))
    e("s_lshl_b32 s%d, s%d, 10" % (sXM0, sW))
    e("s_lshl_b32 s%d, s%d, 13\ns_lshl_b32 s%d, s%d, 11\ns_add_u32 s%d, s%d, s%d\ns_add_u32 s%d, s%d, 8192" %
      (sWM0, sSH, sT0, sFQ, sWM0, sWM0, sT0, sWM0, sWM0))
    e("s_waitcnt lgkmcnt(0)")
    srd(g, SRD_X, P_Q, S*D*2)
    e("s_cmp_eq_u32 s%d, 0\ns_cselect_b32 s%d, s%d, s%d\ns_cselect_b32 s%d, s%d, s%d" %
      (sSH, SRD_W, P_W1, P_W3, SRD_W+1, P_W1+1, P_W3+1))
    e("s_and_b32 s%d, s%d, 0xffff\ns_mov_b32 s%d, %d\ns_mov_b32 s%d, 0x20000" % (SRD_W+1, SRD_W+1, SRD_W+2, D*F*2, SRD_W+3))

    def g1_dma(stage):
        slot = stage % NSLOT
        e("s_add_u32 m0, s%d, %d\ns_movk_i32 s%d, %d" % (sXM0, slot*SLOT, sT0, stage*64))
        g.vmem("buffer_load_dwordx4 v%d, %s, s%d offen lds" % (vXD, srd4(SRD_X), sT0), "g1_%d" % stage)
        for n in range(2):
            e("s_add_u32 m0, s%d, %d\ns_mov_b32 s%d, %d" % (sWM0, slot*SLOT + n*1024, sT0, stage*114688 + n*14336))
            g.vmem("buffer_load_dwordx4 v%d, %s, s%d offen lds" % (vWD, srd4(SRD_W), sT0), "g1_%d" % stage)

    for st in range(5):
        g1_dma(st)
    srd(g, SRD_W2, P_W2, F*D*2)
    srd(g, SRD_WS, P_WS, WS_SIZE)
    srd(g, SRD_OUT, P_OUT, S*D*2)
    srd(g, SRD_DBG, P_DBG, 256)
    srd(g, SRD_SSM, P_SSM, D*S*2)
    e("s_lshl_b32 s%d, s%d, 2\ns_load_dword s%d, s[%d:%d], s%d" % (sT0, sM, sDV, P_SD, P_SD+1, sT0))
    e("s_and_b32 s%d, s%d, 3\ns_lshr_b32 s%d, s%d, 2" % (sWQ, sW, sCH, sW))
    if not OPT.get("nopf"):
        e("s_lshl_b32 s%d, s%d, 3\ns_add_u32 s%d, s%d, s%d" % (sT0, sM, sT0, sT0, sW))
        e("v_lshlrev_b32 v2, 6, v1")
        e("s_lshr_b32 s%d, s%d, 1\ns_lshl_b32 s%d, s%d, 12" % (sT1, sT0, sT1, sT1))
        g.vmem("buffer_load_dword v%d, v2, %s, s%d offen" % (vCV+12, srd4(SRD_W), sT1), "pf")
        e("s_sub_u32 s%d, s%d, 800\ns_lshl_b32 s%d, s%d, 12\ns_cmp_lt_u32 s%d, 800\ns_cselect_b32 s%d, 0x7000000, s%d" % (sT1, sT0, sT1, sT1, sT0, sT1, sT1))
        g.vmem("buffer_load_dword v%d, v2, %s, s%d offen" % (vCV+13, srd4(SRD_X), sT1), "pf")
        e("s_sub_u32 s%d, s%d, 1300\ns_lshl_b32 s%d, s%d, 12\ns_cmp_lt_u32 s%d, 1300\ns_cselect_b32 s%d, 0x7000000, s%d" % (sT1, sT0, sT1, sT1, sT0, sT1, sT1))
        g.vmem("buffer_load_dword v%d, v2, %s, s%d offen" % (vCV+14, srd4(SRD_W2), sT1), "pf")
    e("s_lshl_b32 s%d, s%d, 1\ns_add_u32 s%d, s%d, s%d\ns_lshl_b32 s%d, s%d, 12" % (sT0, sM, sT0, sT0, sCH, sT0, sT0))
    e("s_lshl_b32 s%d, s%d, 10\ns_add_u32 s%d, s%d, s%d" % (sT1, sWQ, sT1, sT1, sT0))
    e("v_lshlrev_b32 v%d, 4, v1" % vL16)
    g.vmem("buffer_load_dwordx4 %s, v%d, %s, s%d offen" % (vr(vCV, 4), vL16, srd4(SRD_SSM), sT1), "hk")
    g.vmem("buffer_load_dwordx2 %s, v%d, %s, s%d offen offset:16" % (vr(vCV+4, 2), vL16, srd4(SRD_SSM), sT1), "hk")
    e("v_cmp_eq_u32 vcc, 1, v1\nv_mov_b32 v2, 0x7000000\ns_nop 0\nv_cndmask_b32 v2, v2, 0, vcc")
    g.vmem("buffer_load_dwordx2 %s, v2, %s, s%d offen" % (vr(vCV+10, 2), srd4(SRD_SSM), sT0), "hk")
    e("v_and_b32 v2, 31, v1\nv_lshrrev_b32 v3, 5, v1\nv_bfe_u32 v4, v1, 2, 2\nv_xor_b32 v5, v3, v4")
    e("s_lshl_b32 s%d, s%d, 12" % (sT0, sSH))
    e("v_lshlrev_b32 v6, 6, v2\nv_lshl_add_u32 v6, v5, 4, v6\nv_add_u32 v%d, s%d, v6\nv_xor_b32 v%d, 32, v%d" % (vXA+0, sT0, vXA+1, vXA+0))
    e("v_bfe_u32 v2, v1, 4, 1\nv_bfe_u32 v4, v1, 2, 2\nv_and_b32 v5, 3, v1")
    e("v_lshl_or_b32 v6, v2, 2, v4\ns_lshl_b32 s%d, s%d, 1\nv_xor_b32 v6, s%d, v6" % (sT0, sFQ, sT0))
    e("v_lshlrev_b32 v6, 5, v6\nv_lshl_add_u32 v6, v5, 3, v6\nv_lshl_add_u32 v6, v4, 8, v6\nv_lshl_add_u32 v6, v3, 11, v6\nv_lshl_add_u32 v6, v2, 13, v6")
    e("v_add_u32 v%d, 8192, v6\nv_xor_b32 v%d, 32, v%d" % (vWA+0, vWA+1, vWA+0))
    e("s_mul_i32 s%d, s%d, 6144\ns_add_u32 s%d, s%d, %d" % (sW2M0, sW, sW2M0, sW2M0, W2RING))
    e("v_lshrrev_b32 v6, 1, v4\nv_lshlrev_b32 v6, 6, v6\nv_lshl_add_u32 v6, v2, 5, v6\nv_lshl_add_u32 v6, v5, 3, v6\nv_lshl_add_u32 v6, v4, 7, v6\nv_lshl_add_u32 v6, v3, 9, v6")
    e("v_add_u32 v%d, s%d, v6\nv_xor_b32 v%d, 64, v%d" % (vW2A, sW2M0, vW2A+1, vW2A))
    e("v_lshrrev_b32 v2, 3, v1\nv_bfe_u32 v4, v1, 4, 1\nv_and_b32 v5, 7, v1\nv_lshlrev_b32 v4, 2, v4\nv_xor_b32 v5, v5, v4")
    e("s_mul_i32 s%d, s%d, 224\nv_add_u32 v2, s%d, v2\nv_mul_u32_u24 v2, 896, v2\nv_lshl_add_u32 v2, v5, 4, v2" % (sT0, sW, sT0))
    e("s_lshl_b32 s%d, s%d, 7\nv_add_u32 v%d, s%d, v2" % (sT0, sDB, vW2D, sT0))
    e("v_and_b32 v2, 15, v1\nv_lshrrev_b32 v3, 4, v1\nv_add_u32 v4, 1, v2\nv_and_b32 v5, 3, v4\nv_and_b32 v4, 28, v4")
    e("v_mul_u32_u24 v5, %d, v5\nv_lshl_add_u32 v5, v4, 1, v5\nv_lshl_add_u32 v5, v3, 4, v5" % CSTR)
    e("s_mul_i32 s%d, s%d, %d\ns_lshl_b32 s%d, s%d, 7\ns_add_u32 s%d, s%d, s%d" % (sT0, sCH, CV_CH, sT1, sWQ, sT0, sT0, sT1))
    e("v_add_u32 v%d, s%d, v5" % (vFA, sT0))
    e("v_lshlrev_b32 v4, 4, v3\nv_lshlrev_b32 v5, 5, v2\nv_sub_u32 v4, v4, v5\ns_add_u32 s%d, s%d, %d\nv_add_u32 v%d, s%d, v4" % (sT0, sT0, CV_UB + 480, vGA, sT0))
    e("s_lshl_b32 s%d, s%d, 2\ns_lshl_b32 s%d, s%d, 1\ns_add_u32 s%d, s%d, s%d" % (sT0, sRB, sT1, sSH, sT0, sT0, sT1))
    e("s_lshl_b32 s%d, s%d, 3\ns_lshl_b32 s%d, s%d, 1\ns_add_u32 s%d, s%d, s%d" % (sT2, sFC, sT3, sFQ, sT2, sT2, sT3))
    e("s_mul_i32 s%d, s%d, 112\ns_add_u32 s%d, s%d, s%d\ns_lshl_b32 s%d, s%d, 10\ns_add_u32 s%d, s%d, %d\ns_add_u32 s%d, s%d, %d" %
      (sH0, sT0, sH0, sH0, sT2, sH0, sH0, sH0, sH0, WS_H, sH1, sH0, 112*1024))
    e("s_mul_i32 s%d, s%d, 224\ns_mul_i32 s%d, s%d, 14\ns_add_u32 s%d, s%d, s%d\ns_lshl_b32 s%d, s%d, 10\ns_add_u32 s%d, s%d, %d\ns_add_u32 s%d, s%d, %d" %
      (sHL0, sSB, sT0, sW, sHL0, sHL0, sT0, sHL0, sHL0, sHL0, sHL0, WS_H, sHL1, sHL0, 112*1024))
    e("s_waitcnt lgkmcnt(0)")
    e("s_lshl_b32 s%d, s%d, 16\ns_and_b32 s%d, s%d, 0xffff0000\ns_cmp_eq_u32 s%d, 0\ns_cselect_b32 s%d, s%d, s%d" % (sT0, sDV, sT1, sDV, sCH, sDV, sT0, sT1))
    stamp(g, 0, DEV)

    def g1_reads(stage, kidx):
        slot = stage % NSLOT
        off = (slot % 2) * SLOT
        fb = vFB + 16*kidx
        pre = []
        if slot % 2 == 0 and stage > 0:
            delta = (2*SLOT if slot != 0 else -(NSLOT-2)*SLOT) & 0xffffffff
            pre.append("v_add_u32 v%d, %d, v%d" % (vXA+kidx, delta, vXA+kidx))
            if kidx == 0:
                for r in (vWA, vWA+1):
                    pre.append("v_add_u32 v%d, %d, v%d" % (r, delta, r))
        ko = kidx*4096
        R = [
            "ds_read_b128 %s, v%d offset:%d" % (vr(fb, 4), vXA+kidx, off),
            "ds_read_b64_tr_b16 %s, v%d offset:%d" % (vr(fb+8, 2), vWA, off+ko),
            "ds_read_b64_tr_b16 %s, v%d offset:%d" % (vr(fb+10, 2), vWA, off+ko+1024),
            "ds_read_b128 %s, v%d offset:%d" % (vr(fb+4, 4), vXA+kidx, off+2048),
            "ds_read_b64_tr_b16 %s, v%d offset:%d" % (vr(fb+12, 2), vWA+1, off+ko),
            "ds_read_b64_tr_b16 %s, v%d offset:%d" % (vr(fb+14, 2), vWA+1, off+ko+1024),
        ]
        return pre, R

    def mfma32(acc, a, b, first):
        e("v_mfma_f32_32x32x16_bf16 %s, %s, %s, %s" % (vr(acc, 16), vr(a, 4), vr(b, 4), "0" if first else vr(acc, 16)))

    flag_load = "buffer_load_dword v%d, v%d, %s, 0 offen sc1" % (vFLG, vTMP, srd4(SRD_DBG))
    def chk_f0():
        e("v_cmp_ne_u32 vcc, 0, v%d\ns_nop 3\ns_cmp_eq_u32 vcc_lo, -1" % vFLG)
    def chk_f1():
        e("v_cmp_ne_u32 vcc, 0, v%d\ns_nop 3\ns_cmp_eq_u32 vcc_hi, -1" % vFLG)
    e("v_lshlrev_b32 v%d, 2, v1" % vTMP)

    vCSA = vW2 + 104
    vNM  = vW2 + 96

    g.wait_vm("g1_0")
    e("s_barrier")
    stamp(g, 1, DEV)
    pre, R = g1_reads(0, 0)
    for r in R: g.ds(r)
    NST = 14
    for st in range(NST):
        for kidx in range(2):
            fb = vFB + 16*kidx
            first = (st == 0 and kidx == 0)
            if kidx == 0:
                pre, R = g1_reads(st, 1)
            elif st + 1 < NST:
                pre, R = g1_reads(st+1, 0)
            else:
                pre, R = [], []
            g.wait_lg_all()
            mfma32(vACC+0, fb+8, fb+0, first)
            for p in pre: e(p)
            for r in R[0:3]: g.ds(r)
            mfma32(vACC+16, fb+8, fb+4, first)
            for r in R[3:6]: g.ds(r)
            mfma32(vACC+32, fb+12, fb+0, first)
            if kidx == 0 and st + 1 < NST:
                g.wait_vm("g1_%d" % (st+1))
                e("s_barrier")
                if st + 5 < NST:
                    g1_dma(st+5)
            if kidx == 1 and st == 9:
                g.vmem(flag_load, "f0")
            if kidx == 1 and st == 11:
                g.wait_vm("f0")
                poll_slow(g, flag_load, chk_f0)
                e("v_and_b32 v2, 31, v1\ns_lshl_b32 s%d, s%d, 7\ns_lshl_b32 s%d, s%d, 6\ns_add_u32 s%d, s%d, s%d" % (sT0, sRB, sT1, sSH, sT0, sT0, sT1))
                e("s_lshl_b32 s%d, s%d, 4\ns_add_u32 s%d, s%d, %d\nv_lshlrev_b32 v3, 4, v2" % (sT0, sT0, sT0, sT0, WS_ST))
                g.vmem("buffer_load_dwordx4 v[8:11], v3, %s, s%d offen sc1" % (srd4(SRD_WS), sT0), "par")
                g.vmem("buffer_load_dwordx4 v[12:15], v3, %s, s%d offen offset:512 sc1" % (srd4(SRD_WS), sT0), "par")
                e("v_bfe_u32 v3, v1, 4, 1\nv_and_b32 v4, 15, v1\nv_mul_u32_u24 v3, 1792, v3\nv_add_lshl_u32 v3, v3, v4, 3")
                e("s_lshl_b32 s%d, s%d, 7\ns_lshl_b32 s%d, s%d, 5\ns_add_u32 s%d, s%d, s%d\ns_lshl_b32 s%d, s%d, 3\ns_add_u32 s%d, s%d, %d" %
                  (sT0, sFC, sT1, sFQ, sT0, sT0, sT1, sT0, sT0, sT0, sT0, WS_CS))
                g.vmem("buffer_load_dwordx2 %s, v3, %s, s%d offen sc1" % (vr(vCSA, 2), srd4(SRD_WS), sT0), "par")
                g.vmem("buffer_load_dwordx2 %s, v3, %s, s%d offen offset:128 sc1" % (vr(vCSA+4, 2), srd4(SRD_WS), sT0), "par")
                e("v_mov_b32 v%d, 0\nv_mov_b32 v%d, 0\nv_mov_b32 v%d, 0\nv_mov_b32 v%d, 0" % (vCSA+2, vCSA+3, vCSA+6, vCSA+7))
                e("v_mov_b32 v%d, 0\nv_mov_b32 v%d, 0\nv_mov_b32 v%d, 0\nv_mov_b32 v%d, 0" % (vNM+2, vNM+3, vNM+6, vNM+7))
            if kidx == 1 and st == 12:
                g.vmem(flag_load, "f1")
            mfma32(vACC+48, fb+12, fb+4, first)
    stamp(g, 2, DEV)
    e("s_barrier")
    def w2_dma(n):
        pos = n % 3
        for hh in range(2):
            e("s_add_u32 m0, s%d, %d\ns_mov_b32 s%d, %d" % (sW2M0, pos*2048 + hh*1024, sT0, n*14336 + hh*7168))
            g.vmem("buffer_load_dwordx4 v%d, %s, s%d offen lds" % (vW2D, srd4(SRD_W2), sT0), "w2_%d" % n)
    def w2_read(n):
        pos = n % 3
        g.wait_vm("w2_%d" % n)
        for dt in range(2):
            for hh in range(2):
                g.ds("ds_read_b64_tr_b16 %s, v%d offset:%d" % (vr(vW2+8*n+4*dt+2*hh, 2), vW2A+dt, pos*2048 + hh*1024), "w2r_%d" % n)
    w2_state = {"dma": 0, "rd": 0}
    def w2_step():
        n = w2_state["rd"]
        if n >= 14: return
        w2_read(n)
        w2_state["rd"] += 1
        m_ = w2_state["dma"]
        if m_ < 14:
            g.wait_lg("w2r_%d" % n)
            w2_dma(m_)
            w2_state["dma"] += 1
    g.wait_vm("par")
    e("v_cmp_gt_u32 vcc, 32, v1\ns_nop 1")
    for t, b in ((0, 8), (1, 12)):
        e("v_cndmask_b32 v%d, 0, v%d, vcc\nv_and_b32 v%d, 0xffff, v%d" % (vNM+4*t, b, vNM+4*t+1, vNM+4*t))
    e("s_nop 1")
    mfma32(vACC+0, vCSA, vNM, False)
    mfma32(vACC+16, vCSA, vNM+4, False)
    mfma32(vACC+32, vCSA+4, vNM, False)
    mfma32(vACC+48, vCSA+4, vNM+4, False)
    g.wait_vm("f1")
    poll_slow(g, flag_load, chk_f1)
    e("s_lshl_b32 s%d, s%d, 1\ns_add_u32 s%d, s%d, s%d\ns_lshl_b32 s%d, s%d, 12" % (sT0, sM, sT0, sT0, sCH, sT0, sT0))
    e("s_lshl_b32 s%d, s%d, 10\ns_add_u32 s%d, s%d, s%d" % (sT1, sWQ, sT1, sT1, sT0))
    g.vmem("buffer_load_dwordx4 %s, v%d, %s, s%d offen sc1" % (vr(vCV+6, 4), vL16, srd4(SRD_WS), sT1), "ur")
    for n in range(3):
        w2_dma(n); w2_state["dma"] += 1
    def hcopies(D0, addr):
        T = vFB
        for i in range(5):
            e("v_alignbit_b32 v%d, v%d, v%d, 16" % (T+i, D0[i+1], D0[i]))
        for i in range(4):
            e("v_mov_b32 v%d, v%d\nv_mov_b32 v%d, v%d\nv_mov_b32 v%d, v%d" % (T+6+i, D0[i], T+10+i, D0[i+1], T+14+i, T+1+i))
        g.ds("ds_write_b128 v%d, %s" % (addr, vr(T+6, 4)))
        g.ds("ds_write_b128 v%d, %s offset:%d" % (addr, vr(T, 4), CSTR))
        g.ds("ds_write_b128 v%d, %s offset:%d" % (addr, vr(T+10, 4), 2*CSTR))
        g.ds("ds_write_b128 v%d, %s offset:%d" % (addr, vr(T+14, 4), 3*CSTR))
    e("s_mul_i32 s%d, s%d, %d\ns_lshl_b32 s%d, s%d, 10\ns_add_u32 s%d, s%d, s%d" % (sT0, sCH, CV_CH, sT1, sWQ, sT1, sT1, sT0))
    e("v_add_u32 v2, s%d, v%d\nv_add_u32 v3, 32, v2" % (sT1, vL16))
    hcopies([vCV+i for i in range(6)], 3)
    lab = g.newlab("L_NOPRE")
    e("s_cmp_lg_u32 s%d, 0\ns_cbranch_scc1 %s" % (sWQ, lab))
    e("s_waitcnt lgkmcnt(0)")
    e("v_mov_b32 v4, 0\nv_mov_b32 v5, 0\nv_mov_b32 v6, 0\nv_mov_b32 v7, 0")
    e("s_mov_b64 exec, 0x3fffffff")
    e("ds_write_b128 v2, v[4:7] offset:%d" % (CV_UB + 4096))
    e("s_mov_b64 exec, 3")
    sv = list(g.lg)
    hcopies([4, 4, 4, 4, vCV+10, vCV+11], 2)
    g.lg = sv
    e("s_mov_b64 exec, -1")
    g.label(lab)
    for t in range(2):
        for stl in range(2):
            acc = vACC + 32*t + 16*stl
            b = (8, 12)[stl]
            for j in range(8):
                e("v_mul_f32 v%d, v%d, v%d" % (acc+8+j, acc+j, acc+8+j))
                e("v_mul_f32 v%d, v%d, v%d" % (acc+j, b+1, acc+j))
            for j in range(8):
                e("v_exp_f32 v%d, v%d" % (acc+j, acc+j))
            for j in range(8):
                e("v_fma_f32 v%d, v%d, v%d, v%d" % (acc+j, acc+j, b+2, b+2))
            for j in range(8):
                e("v_rcp_f32 v%d, v%d" % (acc+j, acc+j))
            for j in range(8):
                e("v_mul_f32 v%d, v%d, v%d" % (acc+8+j, acc+j, acc+8+j))
            for q in range(4):
                e("v_cvt_pk_bf16_f32 v%d, v%d, v%d" % (acc+q, acc+8+2*q, acc+9+2*q))
            g.vmem("buffer_store_dwordx4 %s, v%d, %s, s%d offen offset:%d sc1" % (vr(acc, 4), vL16, srd4(SRD_WS), (sH0, sH1)[stl], t*1024), "hst")
            if t == 0 and stl == 1:
                g.wait_vm("ur")
                g.ds("ds_write_b128 v2, %s offset:%d" % (vr(vCV+6, 4), CV_UB))
            if not (t == 0 and stl == 0):
                w2_step()
    stamp(g, 3, DEV)
    g.wait_lg_all()
    e("s_barrier")
    CA = vACC
    FR = [vFB + 4*i for i in range(8)]
    GR = [vACC + 32 + 4*i for i in range(8)]
    def f_read(rho1, a):
        o = 512*a + 64*rho1
        g.ds("ds_read_b64 %s, v%d offset:%d" % (vr(FR[a], 2), vFA, o), "F%d" % a)
        g.ds("ds_read_b64 %s, v%d offset:%d" % (vr(FR[a]+2, 2), vFA, o+8), "F%d" % a)
    def g_read(rho1, b):
        g.ds("ds_read_b128 %s, v%d offset:%d" % (vr(GR[b], 4), vGA, 512*(7-b) + 64*rho1), "G%d" % b)
    e("v_and_b32 v2, 15, v1\nv_lshrrev_b32 v3, 4, v1\nv_bfe_u32 v4, v1, 1, 2\nv_xor_b32 v3, v3, v4\nv_lshl_add_u32 v3, v2, 2, v3\nv_lshlrev_b32 v3, 4, v3")
    e("s_lshl_b32 s%d, s%d, 13\ns_add_u32 s%d, s%d, %d\nv_add_u32 v%d, s%d, v3" % (sT0, sW, sT0, sT0, CV_PB, vTMP+1, sT0))
    cnt = 0
    for rho1 in range(2):
        if rho1 == 0:
            for i in range(4):
                f_read(0, i); g_read(0, i)
        for t in range(8):
            if t < 4:
                f_read(rho1, t+4); g_read(rho1, t+4)
            g.wait_lg("F%d" % t); g.wait_lg("G%d" % t)
            for a in range(t+1):
                b = t - a
                e("v_mfma_f32_16x16x32_bf16 %s, %s, %s, %s" % (vr(CA+4*t, 4), vr(FR[a], 4), vr(GR[b], 4), "0" if (rho1 == 0 and a == 0) else vr(CA+4*t, 4)))
                cnt += 1
                if cnt == 14:
                    g.wait_vm("hst")
                    e("s_lshl_b32 s%d, s%d, 1\ns_add_u32 s%d, s%d, s%d\ns_mul_i32 s%d, s%d, 14\ns_add_u32 s%d, s%d, s%d\ns_lshl_b32 s%d, s%d, 8" %
                      (sT0, sRB, sT0, sT0, sSH, sT0, sT0, sT0, sT0, sFC, sT0, sT0))
                    e("s_lshl_b32 s%d, s%d, 2\ns_add_u32 s%d, s%d, s%d\ns_add_u32 s%d, s%d, %d" % (sT1, sFQ, sT0, sT0, sT1, sT0, sT0, WS_F2))
                    e("v_mov_b32 v2, 1\nv_mov_b32 v3, 0\ns_mov_b64 exec, 1")
                    g.vmem("buffer_store_dword v2, v3, %s, s%d offen sc1" % (srd4(SRD_WS), sT0), "fl")
                    e("s_mov_b64 exec, -1")
                if cnt % 7 == 0:
                    w2_step()
            if rho1 == 1 and t >= 1:
                e("s_nop %d" % (7 - t))
                g.ds("ds_write_b128 v%d, %s offset:%d" % (vTMP+1, vr(CA+4*(t-1), 4), 1024*(t-1)))
        if rho1 == 0:
            for i in range(4):
                f_read(1, i); g_read(1, i)
    e("s_nop 7")
    g.ds("ds_write_b128 v%d, %s offset:%d" % (vTMP+1, vr(CA+28, 4), 1024*7))
    stamp(g, 4, DEV)
    g.wait_lg_all()
    e("s_barrier")
    e("v_and_b32 v2, 31, v1\nv_lshlrev_b32 v2, 1, v2\nv_bfe_u32 v3, v1, 2, 2\nv_xor_b32 v2, v2, v3\nv_lshrrev_b32 v3, 5, v1\nv_lshlrev_b32 v2, 4, v2\nv_lshl_add_u32 v2, v3, 10, v2")
    e("s_lshl_b32 s%d, s%d, 15\ns_lshl_b32 s%d, s%d, 11\ns_add_u32 s%d, s%d, s%d\ns_add_u32 s%d, s%d, %d" % (sT0, sCH, sT1, sWQ, sT0, sT0, sT1, sT0, sT0, CV_PB))
    e("v_add_u32 v2, s%d, v2\nv_xor_b32 v3, 16, v2" % sT0)
    RB = vFB
    for p in range(4):
        g.ds("ds_read_b128 %s, v2 offset:%d" % (vr(RB+8*p, 4), 8192*p))
        g.ds("ds_read_b128 %s, v3 offset:%d" % (vr(RB+8*p+4, 4), 8192*p))
    e("s_mul_i32 s%d, s%d, %d\ns_lshl_b32 s%d, s%d, 10\ns_sub_u32 s%d, s%d, s%d\ns_add_u32 s%d, s%d, %d" % (sT0, sCH, CV_CH, sT1, sWQ, sT0, sT0, sT1, sT0, sT0, CV_UB + 4080))
    e("v_sub_u32 v4, s%d, v%d" % (sT0, vL16))
    g.ds("ds_read_b128 v[8:11], v4")
    e("v_lshlrev_b32 v%d, 8, v1\ns_mul_i32 s%d, s%d, %d\ns_add_u32 s%d, s%d, %d" % (vTMP, sT3, sSB, 14*256, sT3, sT3, WS_F2))
    f2_load = "buffer_load_dwordx4 %s, v%d, %s, s%d offen sc1" % (vr(vCV, 4), vTMP, srd4(SRD_WS), sT3)
    g.vmem(f2_load, "f2")
    g.wait_lg_all()
    for i in range(8):
        e("v_add_f32 v%d, v%d, v%d\nv_add_f32 v%d, v%d, v%d" % (RB+i, RB+i, RB+8+i, RB+16+i, RB+16+i, RB+24+i))
    for i in range(8):
        e("v_add_f32 v%d, v%d, v%d" % (RB+i, RB+i, RB+16+i))
    for i in range(8):
        ee = 7 - i
        if ee % 2 == 0: e("v_lshlrev_b32 v%d, 16, v%d" % (RB+8+i, 8 + ee//2))
        else: e("v_and_b32 v%d, 0xffff0000, v%d" % (RB+8+i, 8 + ee//2))
    for i in range(8):
        rnd(g, RB+i, RB+i)
        e("v_mul_f32 v%d, s%d, v%d" % (RB+8+i, sDV, RB+8+i))
    for i in range(8):
        rnd(g, RB+8+i, RB+8+i)
    for i in range(8):
        e("v_add_f32 v%d, v%d, v%d" % (RB+i, RB+i, RB+8+i))
    for q in range(4):
        e("v_cvt_pk_bf16_f32 v%d, v%d, v%d" % (RB+16+q, RB+2*q, RB+2*q+1))
    e("s_lshl_b32 s%d, s%d, 1\ns_add_u32 s%d, s%d, s%d\ns_lshl_b32 s%d, s%d, 12" % (sT0, sM, sT0, sT0, sCH, sT1, sT0))
    e("s_lshl_b32 s%d, s%d, 10\ns_add_u32 s%d, s%d, s%d\ns_add_u32 s%d, s%d, %d" % (sT2, sWQ, sT1, sT1, sT2, sT1, sT1, WS_Y2))
    g.vmem("buffer_store_dwordx4 %s, v%d, %s, s%d offen sc1" % (vr(RB+16, 4), vL16, srd4(SRD_WS), sT1), "y2st")
    e("s_mul_i32 s%d, s%d, 448\ns_add_u32 s%d, s%d, s%d\ns_lshl_b32 s%d, s%d, 2\ns_add_u32 s%d, s%d, %d" % (sH0, sWQ, sH0, sH0, sT0, sH0, sH0, sH0, sH0, WS_F3))
    while w2_state["rd"] < 14:
        w2_step()
    stamp(g, 5, DEV)
    e("s_mul_i32 s%d, s%d, 224\ns_lshr_b32 s%d, s%d, 7\ns_add_u32 s%d, s%d, 223\ns_lshr_b32 s%d, s%d, 7" % (sT0, sW, sT1, sT0, sT0, sT0, sT0, sT0))
    e("s_sub_u32 s%d, s%d, s%d\ns_add_u32 s%d, s%d, 1\ns_bfm_b32 s%d, s%d, s%d" % (sT0, sT0, sT1, sT0, sT0, sH1, sT0, sT1))
    def chk_f2():
        e("v_and_b32 v%d, v%d, v%d\nv_and_b32 v%d, v%d, v%d\nv_and_b32 v%d, v%d, v%d" % (vCV, vCV, vCV+1, vCV+2, vCV+2, vCV+3, vCV, vCV, vCV+2))
        e("v_cmp_eq_u32 vcc, 1, v%d\ns_nop 3\ns_and_b32 s%d, vcc_lo, s%d\ns_cmp_eq_u32 s%d, s%d" % (vCV, sT0, sH1, sT0, sH1))
    g.wait_vm("f2")
    poll_slow(g, f2_load, chk_f2)
    stamp(g, 6, DEV)
    HR = [vFB + 4*i for i in range(8)] + [vCV + 4*i for i in range(2)]
    NR = len(HR)
    seq = [(n, st) for n in range(14) for st in range(2)]
    def h_load(i):
        n, st = seq[i]
        e("s_add_u32 s%d, s%d, %d" % (sT0, (sHL0, sHL1)[st], n*1024))
        g.vmem("buffer_load_dwordx4 %s, v%d, %s, s%d offen sc1" % (vr(HR[i % NR], 4), vL16, srd4(SRD_WS), sT0), "h%d" % i)
    for i in range(NR): h_load(i)
    g.wait_vm("y2st")
    e("v_mov_b32 v2, 1\nv_mov_b32 v3, 0\ns_mov_b64 exec, 1")
    g.vmem("buffer_store_dword v2, v3, %s, s%d offen sc1" % (srd4(SRD_WS), sH0), "fl")
    e("s_mov_b64 exec, -1")
    e("v_lshrrev_b32 v2, 3, v0\nv_and_b32 v3, 7, v0\ns_lshl_b32 s%d, s%d, 6\nv_add_u32 v4, s%d, v2" % (sT0, sSB, sT0))
    e("v_mul_u32_u24 v5, 896, v4\nv_lshl_add_u32 v5, v3, 4, v5\ns_lshl_b32 s%d, s%d, 7\nv_add_u32 v%d, s%d, v5" % (sT0, sDB, vXD, sT0))
    e("v_lshlrev_b32 v4, 4, v4\ns_mov_b32 s%d, %d" % (sT0, WS_ST))
    g.vmem("buffer_load_dwordx4 v[8:11], v%d, %s, 0 offen" % (vXD, srd4(SRD_X)), "ex")
    g.vmem("buffer_load_dwordx4 v[12:15], v4, %s, s%d offen sc1" % (srd4(SRD_WS), sT0), "ex")
    e("s_lshr_b32 s%d, s%d, 3\ns_mul_i32 s%d, s%d, 448\ns_lshl_b32 s%d, s%d, 6\ns_add_u32 s%d, s%d, s%d\ns_lshl_b32 s%d, s%d, 2\ns_add_u32 s%d, s%d, %d" %
      (sT3, sSB, sT3, sT3, sT1, sDB, sT3, sT3, sT1, sT3, sT3, sT3, sT3, WS_F3))
    e("v_lshlrev_b32 v%d, 2, v1" % vTMP)
    f3_load = "buffer_load_dword v%d, v%d, %s, s%d offen sc1" % (vFLG, vTMP, srd4(SRD_WS), sT3)
    def chk_f3():
        e("v_cmp_eq_u32 vcc, 1, v%d\ns_nop 3\ns_cmp_eq_u64 vcc, -1" % vFLG)
    g.wait_lg_all()
    for i, (n, st) in enumerate(seq):
        g.wait_vm("h%d" % i)
        for dt in range(2):
            mfma32(vACC + 32*st + 16*dt, vW2 + 8*n + 4*dt, HR[i % NR], n == 0)
        if i + NR < len(seq):
            h_load(i + NR)
        if i == 14:
            g.vmem(f3_load, "f3")
        if i == 22:
            g.wait_vm("f3")
            poll_slow(g, f3_load, chk_f3)
            e("v_lshrrev_b32 v2, 3, v0\nv_and_b32 v3, 7, v0\nv_lshlrev_b32 v4, 12, v2\nv_lshl_add_u32 v4, v3, 4, v4")
            e("s_lshl_b32 s%d, s%d, 18\ns_lshl_b32 s%d, s%d, 7\ns_add_u32 s%d, s%d, s%d\ns_add_u32 s%d, s%d, %d" % (sT0, sDB, sT1, sSB, sT0, sT0, sT1, sT0, sT0, WS_Y2))
            g.vmem("buffer_load_dwordx4 %s, v4, %s, s%d offen sc1" % (vr(vCV+8, 4), srd4(SRD_WS), sT0), "y2t")
    stamp(g, 7, DEV)
    e("s_barrier")
    e("v_xor_b32 v4, s%d, v3\nv_lshlrev_b32 v4, 4, v4\nv_lshl_add_u32 v4, v3, 10, v4\nv_bfe_u32 v5, v0, 3, 3\nv_lshl_add_u32 v4, v5, 1, v4\nv_add_u32 v4, %d, v4" % (sW, G2_Y2))
    e("v_and_b32 v5, 31, v1\nv_lshrrev_b32 v6, 5, v1\nv_and_b32 v7, 15, v1\nv_xor_b32 v6, v6, v7\nv_lshlrev_b32 v6, 4, v6\nv_lshl_add_u32 v6, v5, 8, v6")
    e("s_lshl_b32 s%d, s%d, 14\nv_add_u32 v6, s%d, v6" % (sT0, sW, sT0))
    for k in range(1, 8):
        e("v_xor_b32 v%d, %d, v6" % (vFB+k, 32*k))
    e("v_mov_b32 v%d, v6" % vFB)
    for st in range(2):
        for dt in range(2):
            for q in range(4):
                g.ds("ds_write_b128 v%d, %s offset:%d" % (vFB + 4*dt + q, vr(vACC + 32*st + 16*dt + 4*q, 4), st*8192))
    g.wait_vm("y2t")
    for i in range(4):
        g.ds("ds_write_b16 v4, v%d offset:%d" % (vCV+8+i, 256*i))
        g.ds("ds_write_b16_d16_hi v4, v%d offset:%d" % (vCV+8+i, 256*i + 128))
    g.wait_lg_all()
    e("s_barrier")
    stamp(g, 8, DEV)
    e("v_lshrrev_b32 v2, 3, v0\nv_and_b32 v5, 15, v2\nv_lshlrev_b32 v6, 1, v3\nv_xor_b32 v6, v6, v5\nv_lshlrev_b32 v6, 4, v6\nv_lshl_add_u32 v6, v2, 8, v6\nv_xor_b32 v7, 16, v6")
    e("v_add_u32 v%d, 0x10000, v6\nv_add_u32 v%d, 0x10000, v7" % (vTMP, vTMP+1))
    PR = vACC
    for p in range(8):
        a0, a1 = (6, 7) if p < 4 else (vTMP, vTMP+1)
        g.ds("ds_read_b128 %s, v%d offset:%d" % (vr(PR+8*p, 4), a0, (p % 4)*16384), "p%d" % p)
        g.ds("ds_read_b128 %s, v%d offset:%d" % (vr(PR+8*p+4, 4), a1, (p % 4)*16384), "p%d" % p)
        if p == 5:
            g.wait_lg("p1")
            for i in range(8): e("v_add_f32 v%d, v%d, v%d" % (PR+i, PR+i, PR+8+i))
    e("v_lshrrev_b32 v5, 3, v2\nv_xor_b32 v5, v5, v3\nv_lshlrev_b32 v5, 4, v5\nv_lshl_add_u32 v5, v2, 7, v5\nv_add_u32 v5, %d, v5" % G2_Y2)
    g.wait_lg("p3")
    g.ds("ds_read_b128 %s, v5" % vr(vCV, 4), "y2")
    for i in range(8): e("v_add_f32 v%d, v%d, v%d" % (PR+16+i, PR+16+i, PR+24+i))
    g.wait_lg("p5")
    for i in range(8): e("v_add_f32 v%d, v%d, v%d" % (PR+32+i, PR+32+i, PR+40+i))
    for i in range(8): e("v_add_f32 v%d, v%d, v%d" % (PR+i, PR+i, PR+16+i))
    g.wait_lg("p7")
    for i in range(8): e("v_add_f32 v%d, v%d, v%d" % (PR+48+i, PR+48+i, PR+56+i))
    for i in range(8): e("v_add_f32 v%d, v%d, v%d" % (PR+32+i, PR+32+i, PR+48+i))
    for i in range(8): e("v_add_f32 v%d, v%d, v%d" % (PR+i, PR+i, PR+32+i))
    for i in range(8): rnd(g, PR+i, PR+i)
    for i in range(8): e("v_mul_f32 v%d, 0xbfb8aa3b, v%d" % (PR+8+i, PR+i))
    for i in range(8): e("v_exp_f32 v%d, v%d" % (PR+8+i, PR+8+i))
    g.wait_vm("ex")
    g.wait_lg_all()
    X = PR+16; Y = PR+24; XN = PR+32
    for i in range(8):
        if i % 2 == 0: e("v_lshlrev_b32 v%d, 16, v%d\nv_lshlrev_b32 v%d, 16, v%d" % (X+i, 8+i//2, Y+i, vCV+i//2))
        else: e("v_and_b32 v%d, 0xffff0000, v%d\nv_and_b32 v%d, 0xffff0000, v%d" % (X+i, 8+i//2, Y+i, vCV+i//2))
    e("v_lshlrev_b32 v12, 16, v12")
    for i in range(8): e("v_add_f32 v%d, 1.0, v%d\nv_add_f32 v%d, v%d, v12" % (PR+8+i, PR+8+i, XN+i, X+i))
    for i in range(8): e("v_rcp_f32 v%d, v%d" % (PR+8+i, PR+8+i))
    for i in range(8): rnd(g, XN+i, XN+i)
    for i in range(8): e("v_mul_f32 v%d, v%d, v15\nv_mul_f32 v%d, v%d, v%d" % (XN+i, XN+i, PR+i, PR+i, PR+8+i))
    for i in range(8):
        rnd(g, XN+i, XN+i); rnd(g, PR+i, PR+i)
    for i in range(8): e("v_mul_f32 v%d, v%d, v%d" % (XN+i, XN+i, Y+i))
    for i in range(8): rnd(g, XN+i, XN+i)
    for i in range(8): e("v_mul_f32 v%d, v%d, v%d" % (XN+i, XN+i, PR+i))
    for i in range(8): rnd(g, XN+i, XN+i)
    for i in range(8): e("v_add_f32 v%d, v%d, v%d" % (XN+i, XN+i, X+i))
    for q in range(4): e("v_cvt_pk_bf16_f32 v%d, v%d, v%d" % (PR+q, XN+2*q, XN+2*q+1))
    g.vmem("buffer_store_dwordx4 %s, v%d, %s, 0 offen" % (vr(PR, 4), vXD, srd4(SRD_OUT)), "out")
    if DEV:
        g.wait_vm_all()
        stamp(g, 9, DEV)
        e("s_memrealtime s[62:63]\ns_waitcnt lgkmcnt(0)\ns_mov_b32 s101, s62")
        dump_stamps(g)

def service_wg(g, DEV):
    e = g.e
    sJ = 2
    LC = 57344
    LS = LC + 4096
    e("s_waitcnt lgkmcnt(0)")
    srd(g, SRD_X, P_Q, S*D*2)
    e("s_cmp_lt_u32 s2, 16\ns_cselect_b32 s%d, s%d, s%d\ns_cselect_b32 s%d, s%d, s%d" % (SRD_W, P_W1, P_W3, SRD_W+1, P_W1+1, P_W3+1))
    e("s_and_b32 s%d, s%d, 0xffff\ns_mov_b32 s%d, %d\ns_mov_b32 s%d, 0x20000" % (SRD_W+1, SRD_W+1, SRD_W+2, D*F*2, SRD_W+3))
    XA = 16; WB = 44; KB = 100; VB = 144; SKP = 176; SKF = 192; T = 224
    e("v_lshrrev_b32 v2, 3, v0\nv_and_b32 v3, 7, v0\ns_lshl_b32 s%d, s2, 6\nv_add_u32 v4, s%d, v2\nv_mul_u32_u24 v4, 896, v4\nv_lshl_add_u32 v4, v3, 4, v4" % (sT0, sT0))
    for i in range(7):
        g.vmem("buffer_load_dwordx4 %s, v4, %s, 0 offen offset:%d" % (vr(XA+4*i, 4), srd4(SRD_X), 128*i), "A")
    e("v_and_b32 v5, 15, v0\nv_lshrrev_b32 v6, 4, v0\nv_mul_u32_u24 v6, 3584, v6\nv_lshl_add_u32 v6, v5, 4, v6")
    e("s_and_b32 s%d, s2, 15\ns_mul_i32 s%d, s%d, 224\nv_add_u32 v6, s%d, v6" % (sT0, sT0, sT0, sT0))
    e("v_cmp_gt_u32 vcc, 14, v5\nv_mov_b32 v7, 0x7000000\ns_nop 0\nv_cndmask_b32 v6, v7, v6, vcc")
    for i in range(14):
        e("s_mov_b32 s%d, %d" % (sT0, i*32*3584))
        g.vmem("buffer_load_dwordx4 %s, v6, %s, s%d offen" % (vr(WB+4*i, 4), srd4(SRD_W), sT0), "B")
    srd(g, SRD_K, P_K, S*D*2)
    srd(g, SRD_V, P_V, S*D*2)
    srd(g, SRD_SK, P_SK, D*4*2)
    srd(g, SRD_WS, P_WS, WS_SIZE)
    srd(g, SRD_DBG, P_DBG, 256)
    stamp(g, 0, DEV)
    e("v_mul_u32_u24 v8, 1171, v0\nv_lshrrev_b32 v8, 16, v8\nv_mul_u32_u24 v9, 56, v8\nv_sub_u32 v9, v0, v9")
    e("s_cmp_eq_u32 s%d, 7\ns_cbranch_scc1 L_S7A" % sW)
    e("s_lshl_b32 s%d, s2, 6\nv_lshlrev_b32 v10, 3, v8\nv_add_u32 v10, s%d, v10\nv_mul_u32_u24 v10, 896, v10\nv_lshl_add_u32 v10, v9, 4, v10" % (sT0, sT0))
    e("v_subrev_u32 v11, 2688, v10\nv_subrev_u32 v12, 1792, v10\nv_subrev_u32 v13, 896, v10\nv_lshlrev_b32 v14, 6, v9\ns_movk_i32 s%d, 3584" % sT1)
    for i in range(4):
        e("buffer_load_dwordx4 %s, v14, %s, 0 offen offset:%d" % (vr(SKP+4*i, 4), srd4(SRD_SK), 16*i))
    for i in range(3):
        e("buffer_load_dwordx4 %s, v%d, %s, 0 offen" % (vr(KB+4*i, 4), 11+i, srd4(SRD_K)))
    for r in range(8):
        so, off = ("0", r*896) if r < 4 else ("s%d" % sT1, (r-4)*896)
        e("buffer_load_dwordx4 %s, v10, %s, %s offen offset:%d" % (vr(KB+12+4*r, 4), srd4(SRD_K), so, off))
        e("buffer_load_dwordx4 %s, v10, %s, %s offen offset:%d" % (vr(VB+4*r, 4), srd4(SRD_V), so, off))
    e("s_waitcnt vmcnt(37)")
    e("s_branch L_SA")
    g.label("L_S7A")
    e("v_mov_b32 v10, 0\nv_mov_b32 v11, 0\nv_mov_b32 v12, 0\nv_mov_b32 v13, 0\nv_lshlrev_b32 v14, 8, v1\nv_lshlrev_b32 v15, 2, v1")
    e("s_mul_i32 s%d, s2, %d\ns_add_u32 s%d, s%d, %d\ns_mul_i32 s%d, s2, 224\ns_add_u32 s%d, s%d, %d" % (sT0, 14*256, sT0, sT0, WS_F2, sT1, sT1, sT1, WS_F3))
    e("s_mov_b64 exec, 0x3fff\nbuffer_store_dwordx4 v[10:13], v14, %s, s%d offen sc1" % (srd4(SRD_WS), sT0))
    e("s_mov_b32 exec_lo, -1\ns_mov_b32 exec_hi, 0xffffff\nbuffer_store_dword v10, v15, %s, s%d offen sc1\ns_mov_b64 exec, -1" % (srd4(SRD_WS), sT1))
    e("s_waitcnt vmcnt(16)")
    g.label("L_SA")
    g.vm = []
    S1, S2 = T, T+1
    e("v_mov_b32 v%d, 0\nv_mov_b32 v%d, 0\nv_mov_b32 v%d, 0\nv_mov_b32 v%d, 0" % (T, T+1, T+2, T+3))
    for i in range(28):
        e("v_dot2c_f32_bf16 v%d, s%d, v%d\nv_dot2c_f32_bf16 v%d, v%d, v%d" % (T + 2*(i % 2), sONES, XA+i, T+1 + 2*(i % 2), XA+i, XA+i))
    e("s_nop 2\nv_add_f32 v%d, v%d, v%d\nv_add_f32 v%d, v%d, v%d\ns_nop 1" % (S1, S1, T+2, S2, S2, T+3))
    for dpp in ("quad_perm:[1,0,3,2]", "quad_perm:[2,3,0,1]", "row_half_mirror"):
        e("v_add_f32_dpp v%d, v%d, v%d %s row_mask:0xf bank_mask:0xf\nv_add_f32_dpp v%d, v%d, v%d %s row_mask:0xf bank_mask:0xf\ns_nop 1" % (S1, S1, S1, dpp, S2, S2, S2, dpp))
    b = T
    e("v_mul_f32 v%d, 0x3b124925, v%d\nv_mul_f32 v%d, 0x3b124925, v%d" % (b, b, b+1, b+1))
    e("v_fma_f32 v%d, -v%d, v%d, v%d\nv_max_f32 v%d, 0, v%d" % (b+1, b, b, b+1, b+1, b+1))
    e("v_cvt_pk_bf16_f32 v%d, -v%d, -v%d\nv_cvt_pk_bf16_f32 v%d, 0, v%d" % (b+4, b, b, b+1, b+1))
    e("v_add_f32 v%d, 0x3727c5ac, v%d\nv_cvt_pk_bf16_f32 v%d, 0, v%d" % (b+1, b+1, b+1, b+1))
    e("v_sqrt_f32 v%d, v%d\ns_nop 0\nv_cvt_pk_bf16_f32 v%d, 0, v%d\nv_rcp_f32 v%d, v%d\ns_nop 0" % (b+1, b+1, b+1, b+1, b+7, b+1))
    e("v_mul_f32 v%d, 0xbfb8aa3b, v%d\nv_mul_f32 v%d, v%d, v%d" % (b+5, b+7, b+6, b+1, b+1))
    e("v_lshlrev_b32 v4, 4, v2\nv_add_u32 v4, %d, v4\nv_cmp_eq_u32 vcc, 0, v3\ns_and_saveexec_b64 s[62:63], vcc" % LS)
    e("ds_write_b128 v4, %s\ns_mov_b64 exec, -1" % vr(b+4, 4))
    e("s_cmp_eq_u32 s%d, 7\ns_cbranch_scc1 L_S7B\ns_waitcnt vmcnt(23)\ns_branch L_SB" % sW)
    g.label("L_S7B")
    e("s_waitcnt vmcnt(2)")
    g.label("L_SB")
    C = XA
    for k in range(8): e("v_mov_b32 v%d, 0" % (C+k))
    e("s_mov_b32 s%d, 0x3f80\ns_mov_b32 s%d, 0x3f800000" % (sT0, sT1))
    for i in range(14):
        for p in range(4):
            e("v_dot2c_f32_bf16 v%d, s%d, v%d\nv_dot2c_f32_bf16 v%d, s%d, v%d" % (C+2*p, sT0, WB+4*i+p, C+2*p+1, sT1, WB+4*i+p))
    e("s_nop 3")
    for k in range(4): e("v_permlane32_swap_b32 v%d, v%d" % (C+k, C+k+4))
    for k in range(4): e("v_add_f32 v%d, v%d, v%d" % (C+k, C+k, C+k+4))
    e("s_nop 1")
    for k in range(2): e("v_permlane16_swap_b32 v%d, v%d" % (C+k, C+k+2))
    for k in range(2): e("v_add_f32 v%d, v%d, v%d" % (C+k, C+k, C+k+2))
    e("v_and_b32 v4, 15, v1\nv_lshrrev_b32 v5, 4, v1\nv_lshlrev_b32 v4, 5, v4\nv_lshl_add_u32 v4, v5, 3, v4\ns_lshl_b32 s%d, s%d, 9\ns_add_u32 s%d, s%d, %d\nv_add_u32 v4, s%d, v4" % (sT0, sW, sT0, sT0, LC, sT0))
    e("ds_write_b64 v4, %s" % vr(C, 2))
    e("s_waitcnt lgkmcnt(0)\ns_barrier")
    e("s_cmp_lg_u32 s%d, 7\ns_cbranch_scc1 L_ST" % sW)
    e("v_lshlrev_b32 v4, 4, v1\nds_read_b128 v[16:19], v4 offset:%d\nv_lshlrev_b32 v5, 3, v1" % LS)
    for p in range(8):
        e("ds_read_b64 %s, v5 offset:%d" % (vr(20+2*p, 2), LC + 512*p))
    e("s_lshl_b32 s%d, s2, 10\ns_add_u32 s%d, s%d, %d\ns_waitcnt lgkmcnt(0)" % (sT0, sT0, sT0, WS_ST))
    e("buffer_store_dwordx4 v[16:19], v4, %s, s%d offen sc1" % (srd4(SRD_WS), sT0))
    for k in range(2):
        e("v_add_f32 v%d, v%d, v%d\nv_add_f32 v%d, v%d, v%d\nv_add_f32 v%d, v%d, v%d\nv_add_f32 v%d, v%d, v%d" %
          (20+k, 20+k, 22+k, 24+k, 24+k, 26+k, 28+k, 28+k, 30+k, 32+k, 32+k, 34+k))
        e("v_add_f32 v%d, v%d, v%d\nv_add_f32 v%d, v%d, v%d\nv_add_f32 v%d, v%d, v%d" % (20+k, 20+k, 24+k, 28+k, 28+k, 32+k, 20+k, 20+k, 28+k))
        e("v_cvt_pk_bf16_f32 v36, 0, v%d\nv_sub_f32 v37, v%d, v36\nv_cvt_pk_bf16_f32 v38, 0, v37\nv_sub_f32 v37, v37, v38" % (20+k, 20+k))
        e("v_cvt_pk_bf16_f32 v%d, v36, v38\nv_cvt_pk_bf16_f32 v%d, v37, 0" % (40+2*k, 41+2*k))
    e("s_mul_i32 s%d, s2, 896\ns_add_u32 s%d, s%d, %d\ns_mov_b32 exec_lo, -1\ns_mov_b32 exec_hi, 0xffffff" % (sT0, sT0, sT0, WS_CS))
    e("buffer_store_dwordx4 v[40:43], v4, %s, s%d offen sc1\ns_mov_b64 exec, -1" % (srd4(SRD_WS), sT0))
    e("s_waitcnt vmcnt(0)")
    e("v_mov_b32 v4, 1\nv_mov_b32 v5, s2\nv_lshlrev_b32 v5, 2, v5\ns_mov_b64 exec, 1\nbuffer_store_dword v4, v5, %s, 0 offen sc1\ns_mov_b64 exec, -1" % srd4(SRD_DBG))
    stamp(g, 1, DEV)
    e("s_branch L_STD")
    g.label("L_ST")
    e("s_waitcnt vmcnt(0)")
    stamp(g, 1, DEV)
    for i in range(16):
        e("v_lshlrev_b32 v%d, 16, v%d\nv_and_b32 v%d, 0xffff0000, v%d" % (SKF+2*i, SKP+i, SKF+2*i+1, SKP+i))
    e("v_sub_u32 v4, 7, v8\nv_xor_b32 v4, v4, v9\nv_and_b32 v4, 7, v4\nv_lshlrev_b32 v4, 4, v4\nv_lshl_add_u32 v4, v9, 10, v4")
    U = 16
    for p in range(4):
        KU = U; VU = U+22; RS = U+38; PK = U+54
        for r in range(11):
            e("v_lshlrev_b32 v%d, 16, v%d\nv_and_b32 v%d, 0xffff0000, v%d" % (KU+r, KB+4*r+p, KU+11+r, KB+4*r+p))
        for r in range(8):
            e("v_lshlrev_b32 v%d, 16, v%d\nv_and_b32 v%d, 0xffff0000, v%d" % (VU+r, VB+4*r+p, VU+8+r, VB+4*r+p))
        for hf in range(2):
            ch = 2*p + hf
            tp = SKF + 4*ch
            for r in range(8): e("v_mul_f32 v%d, v%d, v%d" % (RS+8*hf+r, KU+11*hf+r, tp+3))
            for tap in (2, 1, 0):
                for r in range(8): e("v_fmac_f32 v%d, v%d, v%d" % (RS+8*hf+r, KU+11*hf+r+3-tap, tp+tap))
            for r in range(8): e("v_mul_f32 v%d, v%d, v%d" % (RS+8*hf+r, RS+8*hf+r, VU+8*hf+r))
            pk = PK + 8*(p % 2) + 4*hf
            for q in range(4): e("v_cvt_pk_bf16_f32 v%d, v%d, v%d" % (pk+q, RS+8*hf+7-2*q, RS+8*hf+6-2*q))
            e("ds_write_b128 v4, %s offset:%d" % (vr(pk, 4), 128*ch))
        if p == 1: e("s_waitcnt lgkmcnt(0)")
    g.label("L_STD")
    e("s_waitcnt lgkmcnt(0)\ns_barrier")
    stamp(g, 2, DEV)
    e("v_lshrrev_b32 v2, 3, v0\nv_and_b32 v3, 7, v0\nv_xor_b32 v4, s%d, v3\nv_lshlrev_b32 v4, 4, v4\nv_lshl_add_u32 v4, v2, 7, v4" % sW)
    e("v_lshlrev_b32 v5, 12, v2\nv_lshl_add_u32 v5, v3, 4, v5\ns_lshl_b32 s%d, s2, 7\ns_sub_u32 s%d, %d, s%d" % (sT0, sT0, WS_UR + 4096 - 128, sT0))
    for i in range(7):
        e("ds_read_b128 %s, v4 offset:%d" % (vr(16+4*i, 4), 8192*i))
    for i in range(7):
        e("s_waitcnt lgkmcnt(%d)\ns_add_u32 s%d, s%d, %d" % (6-i, sT1, sT0, i*64*4096))
        e("buffer_store_dwordx4 %s, v5, %s, s%d offen sc1" % (vr(16+4*i, 4), srd4(SRD_WS), sT1))
    e("s_waitcnt vmcnt(0)\ns_barrier")
    lab = g.newlab("L_NF1")
    e("s_cmp_lg_u32 s%d, 0\ns_cbranch_scc1 %s" % (sW, lab))
    e("v_mov_b32 v4, 1\nv_mov_b32 v5, s2\nv_lshlrev_b32 v5, 2, v5\ns_mov_b64 exec, 1\nbuffer_store_dword v4, v5, %s, 0 offen offset:128 sc1\ns_mov_b64 exec, -1" % srd4(SRD_DBG))
    g.label(lab)
    if DEV:
        stamp(g, 3, DEV)
        e("s_memrealtime s[62:63]\ns_waitcnt lgkmcnt(0)\ns_mov_b32 s101, s62")
        dump_stamps(g)

def dump_stamps(g):
    e = g.e
    e("s_lshl_b32 s%d, s2, 3\ns_add_u32 s%d, s%d, s%d\ns_lshl_b32 s%d, s%d, 6\ns_add_u32 s%d, s%d, %d" % (sT0, sT0, sT0, sW, sT0, sT0, sT0, sT0, WS_DBG))
    for i in range(12):
        e("v_mov_b32 v%d, s%d" % (2+i, sTS+i))
    e("v_mov_b32 v14, 0\ns_mov_b64 exec, 1")
    for i in range(3):
        e("buffer_store_dwordx4 %s, v14, %s, s%d offen offset:%d" % (vr(2+4*i, 4), srd4(SRD_WS), sT0, 16*i))
    e("s_waitcnt vmcnt(0)")

HEADER = open("cdna_kernels/%s.s.ref" % NAME).read().split("; @launch")[0]

def emit(g, path):
    out = [HEADER.rstrip("\n")]
    out.append("; @launch grid=(256,1,1) block=(512,1,1) lds=%d" % LDS_TOTAL)
    out.append('.amdgcn_target "amdgcn-amd-amdhsa--gfx950"\n.text\n.globl %s_kernel\n.p2align 8\n.type %s_kernel,@function' % (NAME, NAME))
    out += g.L
    out.append('.section .rodata,"a"\n.p2align 6\n.amdhsa_kernel %s_kernel\n  .amdhsa_next_free_vgpr 256\n  .amdhsa_next_free_sgpr 102\n  .amdhsa_accum_offset 256\n  .amdhsa_group_segment_fixed_size 0\n  .amdhsa_kernarg_size 104\n  .amdhsa_user_sgpr_count 2\n  .amdhsa_user_sgpr_kernarg_segment_ptr 1\n  .amdhsa_system_sgpr_workgroup_id_x 1\n.end_amdhsa_kernel' % NAME)
    open(path, "w").write("\n".join(out) + "\n")

if __name__ == "__main__":
    dev = "--final" not in sys.argv
    for a in sys.argv[2:]:
        if a.startswith("-D"): OPT[a[2:]] = 1
    g = build(DEV=dev)
    emit(g, sys.argv[1])
```

```python
import sys

NAME = "recurrent_scan__ssm_conv_h3__glu_gated_swiglu__prompt"
S, D, F = 2048, 448, 1792
OPT = {}

WS_UR   = 0
WS_Y2   = 2 << 20
WS_H    = 4 << 20
WS_ST   = 12 << 20
WS_CS   = (12 << 20) + (64 << 10)
WS_F2   = 13 << 20
WS_F3   = (13 << 20) + (256 << 10)
WS_F1   = (13 << 20) + (512 << 10)
WS_DBG  = 14 << 20
WS_SIZE = 16 << 20
SPIN_MAX = 200000

class Gen:
    def __init__(self):
        self.L = []
        self.vm = []
        self.lg = []
        self.lab = 0
    def e(self, s):
        for ln in s.strip("\n").split("\n"):
            self.L.append("    " + ln.strip())
    def label(self, s):
        self.L.append(s + ":")
    def newlab(self, p="L"):
        self.lab += 1
        return "%s_%d" % (p, self.lab)
    def c(self, s):
        self.L.append("    ; " + s)
    def vmem(self, s, tag):
        self.e(s); self.vm.append(tag)
    def wait_vm(self, tag):
        if tag not in self.vm: return
        idx = max(i for i, t in enumerate(self.vm) if t == tag)
        n = len(self.vm) - 1 - idx
        self.vm = self.vm[idx+1:]
        self.e("s_waitcnt vmcnt(%d)" % min(n, 63))
    def wait_vm_all(self):
        self.vm = []
        self.e("s_waitcnt vmcnt(0)")
    def ds(self, s, tag="x"):
        self.e(s); self.lg.append(tag)
    def wait_lg(self, tag):
        if tag not in self.lg: return
        idx = max(i for i, t in enumerate(self.lg) if t == tag)
        n = len(self.lg) - 1 - idx
        self.lg = self.lg[idx+1:]
        self.e("s_waitcnt lgkmcnt(%d)" % min(n, 15))
    def wait_lg_all(self):
        self.lg = []
        self.e("s_waitcnt lgkmcnt(0)")

def vr(a, n=1):
    return "v%d" % a if n == 1 else "v[%d:%d]" % (a, a+n-1)
def srd4(a):
    return "s[%d:%d]" % (a, a+3)

SRD_X, SRD_W, SRD_W2, SRD_WS, SRD_OUT, SRD_DBG, SRD_SSM, SRD_K, SRD_V, SRD_SK = 4, 8, 12, 16, 20, 24, 28, 32, 36, 40
sW      = 44
sRB, sFC, sSB, sDB, sM = 45, 46, 47, 48, 49
sSH, sFQ, sWQ, sCH = 50, 51, 52, 53
sONES   = 54
sXM0, sWM0 = 55, 56
sT0, sT1, sT2, sT3 = 57, 58, 59, 60
sDV     = 61
sVCC2   = 62
P_Q, P_K, P_V, P_SK, P_SSM, P_SD, P_BX, P_W1 = 64, 66, 68, 70, 72, 74, 76, 78
P_W3, P_W2, P_OUT, P_DBG, P_WS = 80, 82, 84, 86, 88
sH0, sH1 = 64, 65
sW2M0   = 66
sSPIN   = 67
sHL0, sHL1 = 68, 69
sTS     = 90

vLANE = 1
vXD, vW1D, vW3D = 16, 17, 18
vXA, vWA = 16, 18
vTA = 19
vL16 = 22
vFLG = 23
vW2D = 24
vW2A = 25
vFA, vGA = 27, 28
vTMP = 29
vFB = 32
vACC = 64
vW2 = 128
vCV = 240
vMF = 192

SLOT = 24576
NSLOT = 5
NST = 14
LDS_TOTAL = 163840
T_K = 122880
T_V = T_K + 9216
CSTR = 4160
CV_CH = 4*CSTR
CVB = 98304
CVU = 147968
T_U = 140288
CVX = 131584
CV_US = 4608
CV_PB = 0
W2H = 0
W2M = 32768
G2_Y2 = 131584
LFL = 163584

sCP, sKW, sKH, sJR = 70, 71, 72, 73
sSOX, sSOW = 55, 56
sDM0, sLW = 76, 77
sHW = 51

def srd(g, base, ptr, nbytes):
    g.e("s_mov_b32 s%d, s%d\ns_and_b32 s%d, s%d, 0xffff\ns_mov_b32 s%d, %d\ns_mov_b32 s%d, 0x20000" %
        (base, ptr, base+1, ptr+1, base+2, nbytes, base+3))

def stamp(g, i, DEV, force=False):
    if OPT.get("g1st") and 2 <= i <= 8 and not force and not OPT.get("_svc"): return
    if OPT.get("est") and 3 <= i <= 9 and not force and not OPT.get("_svc"): return
    if DEV:
        g.e("%s s[62:63]\ns_waitcnt lgkmcnt(0)" % ("s_memtime" if OPT.get("cyc") else "s_memrealtime"))
        g.lg = []
        g.e("s_mov_b32 s%d, s62" % (sTS + i))

def rnd(g, d, s):
    g.e("v_cvt_pk_bf16_f32 v%d, 0, v%d" % (d, s))

def poll_slow(g, load, check):
    ok = g.newlab("L_OK"); lp = g.newlab("L_SPIN")
    check()
    g.e("s_cbranch_scc1 %s" % ok)
    g.e("s_mov_b32 s%d, 0" % sSPIN)
    g.label(lp)
    g.e("s_sleep 1")
    g.e(load)
    g.e("s_waitcnt vmcnt(0)")
    check()
    g.e("s_cbranch_scc1 %s" % ok)
    g.e("s_add_u32 s%d, s%d, 1\ns_cmp_lt_u32 s%d, %d\ns_cbranch_scc1 %s" % (sSPIN, sSPIN, sSPIN, SPIN_MAX, lp))
    g.label(ok)


def build(DEV=True):
    g = Gen()
    e = g.e
    g.label(NAME + "_kernel")
    e("s_getpc_b64 s[%d:%d]" % (SRD_SK, SRD_SK+1))
    e("s_cmp_ge_u32 s2, 256\ns_cbranch_scc1 L_END")
    e("s_load_dwordx16 s[64:79], s[0:1], 0\ns_load_dwordx8 s[80:87], s[0:1], 64\ns_load_dwordx2 s[88:89], s[0:1], 96")
    e("s_and_b32 s%d, s%d, 0xffff\ns_mov_b32 s%d, L_CODE_END-%s_kernel-64\ns_mov_b32 s%d, 0x20000" % (SRD_SK+1, SRD_SK+1, SRD_SK+2, NAME, SRD_SK+3))
    e("v_lshlrev_b32 v2, 7, v0")
    e("buffer_load_dword v255, v2, %s, 0 offen" % srd4(SRD_SK))
    if DEV:
        e("s_memrealtime s[100:101]")
    e("v_and_b32 v%d, 63, v0\nv_lshrrev_b32 v2, 6, v0\ns_nop 0\nv_readfirstlane_b32 s%d, v2" % (vLANE, sW))
    e("s_cmp_lt_u32 s2, 32\ns_cbranch_scc1 L_SERVICE")
    main_wg(g, DEV)
    e("s_branch L_END")
    g.vm = []; g.lg = []
    g.label("L_SERVICE")
    service_wg(g, DEV)
    g.label("L_END")
    e("s_endpgm")
    g.label("L_CODE_END")
    return g

def mfma32(g, acc, a, b, first=False):
    g.e("v_mfma_f32_32x32x16_bf16 %s, %s, %s, %s" % (vr(acc, 16), vr(a, 4), vr(b, 4), "0" if first else vr(acc, 16)))

class W2Stream:
    def __init__(self, g, pstr):
        self.g = g; self.dma = 0; self.rd = 0; self.pos = {}; self.free = []; self.ps = pstr
    def issue(self, pos):
        g = self.g; n = self.dma
        if n >= 14: return
        self.pos[n] = pos
        g.e("s_add_u32 m0, s%d, %d\ns_add_u32 s%d, s%d, 7168" % (sW2M0, pos*self.ps, sT0, sKW))
        g.vmem("buffer_load_dwordx4 v%d, %s, s%d offen lds" % (vW2D, srd4(SRD_W2), sKW), "w2_%d" % n)
        g.e("s_add_u32 m0, s%d, %d\ns_add_u32 s%d, s%d, 14336" % (sW2M0, pos*self.ps + 1024, sKW, sKW))
        g.vmem("buffer_load_dwordx4 v%d, %s, s%d offen lds" % (vW2D, srd4(SRD_W2), sT0), "w2_%d" % n)
        g.e("s_cmp_ge_u32 s%d, %d\ns_cselect_b32 s%d, 0, s%d" % (sKW, 14*14336, sKW, sKW))
        self.dma += 1
    def read(self):
        g = self.g; n = self.rd
        if n >= self.dma: return
        pos = self.pos[n]
        g.wait_vm("w2_%d" % n)
        for dt in range(2):
            for hh in range(2):
                g.ds("ds_read_b64_tr_b16 %s, v%d offset:%d" % (vr(vW2+8*n+4*dt+2*hh, 2), vW2A+dt, pos*self.ps + hh*1024), "w2r_%d" % n)
        self.free.append((n, pos))
        self.rd += 1
    def refill(self):
        g = self.g
        if self.free and self.dma < 14:
            n, pos = self.free.pop(0)
            g.wait_lg("w2r_%d" % n)
            self.issue(pos)
    def finish(self):
        while self.rd < 14:
            self.read(); self.refill()

def common_setup(g):
    e = g.e
    e("s_lshl_b32 s%d, s%d, 2\ns_load_dword s%d, s[%d:%d], s%d" % (sT0, sT3, sDV, P_SD, P_SD+1, sT0))
    srd(g, SRD_X, P_Q, S*D*2)
    srd(g, SRD_W2, P_W2, F*D*2)
    srd(g, SRD_WS, P_WS, WS_SIZE)
    srd(g, SRD_OUT, P_OUT, S*D*2)
    srd(g, SRD_DBG, P_DBG, 256)
    srd(g, SRD_SSM, P_SSM, D*S*2)
    srd(g, SRD_SK, P_SK, D*4*2)
    e("s_mov_b32 s%d, s%d\ns_mov_b32 s%d, s%d" % (sJR, sT2, sCP, sT3))
    e("s_bfe_u32 s%d, s%d, 0x10001" % (sCH, sW))
    e("v_lshlrev_b32 v%d, 4, v1\nv_lshlrev_b32 v%d, 6, v1\nv_lshlrev_b32 v%d, 2, v1" % (vL16, vTMP+2, vTMP))
    e("v_lshrrev_b32 v2, 3, v1\nv_bfe_u32 v4, v1, 4, 1\nv_and_b32 v5, 7, v1\nv_lshlrev_b32 v4, 2, v4\nv_xor_b32 v5, v5, v4")
    e("v_mul_u32_u24 v2, 896, v2\nv_lshl_add_u32 v2, v5, 4, v2\ns_lshl_b32 s%d, s%d, 7\nv_add_u32 v9, s%d, v2" % (sT0, sDB, sT0))
    e("s_mul_i32 s%d, s%d, %d\nv_add_u32 v%d, s%d, v9" % (sT0, sW, 224*896, vW2D, sT0))
    e("v_lshrrev_b32 v3, 5, v1\nv_bfe_u32 v2, v1, 4, 1\nv_bfe_u32 v4, v1, 2, 2\nv_and_b32 v5, 3, v1")
    e("v_lshrrev_b32 v6, 1, v4\nv_lshlrev_b32 v7, 5, v2\nv_lshl_add_u32 v7, v5, 3, v7\nv_lshl_add_u32 v7, v4, 7, v7")
    e("v_lshl_add_u32 v8, v6, 6, v7\nv_lshl_add_u32 v8, v3, 9, v8")
    e("v_add_u32 v%d, s%d, v8\nv_xor_b32 v%d, 64, v%d" % (vW2A, sW2M0, vW2A+1, vW2A))
    e("s_mul_i32 s%d, s%d, 224\ns_mul_i32 s%d, s%d, 14\ns_add_u32 s%d, s%d, s%d\ns_lshl_b32 s%d, s%d, 10\ns_add_u32 s%d, s%d, %d\ns_add_u32 s%d, s%d, %d" %
      (sHL0, sSB, sT0, sW, sHL0, sHL0, sT0, sHL0, sHL0, sHL0, sHL0, WS_H, sHL1, sHL0, 112*1024))
    e("s_lshl_b32 s%d, s%d, 1\ns_lshl_b32 s%d, s%d, 2\ns_add_u32 s%d, s%d, s%d\ns_sub_u32 s%d, s%d, 14\ns_cmp_ge_u32 s%d, 14\ns_cselect_b32 s%d, s%d, s%d" %
      (sT0, sDB, sT1, sJR, sT0, sT0, sT1, sT1, sT0, sT0, sT0, sT1, sT0))
    e("s_mul_i32 s%d, s%d, 14336\ns_lshl_b32 s%d, s%d, 10" % (sKW, sT0, sKH, sT0))
    e("s_waitcnt lgkmcnt(0)")
    e("s_lshl_b32 s%d, s%d, 16\ns_and_b32 s%d, s%d, 0xffff0000\ns_cmp_eq_u32 s%d, 0\ns_cselect_b32 s%d, s%d, s%d" % (sT0, sDV, sT1, sDV, sCH, sDV, sT0, sT1))

def lds_signal(g, off):
    e = g.e
    g.wait_lg_all()
    e("s_lshl_b32 s%d, s%d, 2\ns_add_u32 s%d, s%d, %d\nv_mov_b32 v2, s%d\nv_mov_b32 v3, 1\ns_mov_b64 exec, 1\nds_write_b32 v2, v3\ns_mov_b64 exec, -1" % (sT0, sHW, sT0, sT0, LFL + off, sT0))

def lds_wait(g, off, smask):
    e = g.e
    lp = g.newlab("L_LW"); ok = g.newlab("L_LO")
    e("v_lshlrev_b32 v2, 2, v1\nv_add_u32 v2, %d, v2\nv_min_u32 v2, %d, v2\ns_mov_b32 s%d, 0" % (LFL + off, LFL + 252, sSPIN))
    g.label(lp)
    e("ds_read_b32 v3, v2\ns_waitcnt lgkmcnt(0)\nv_cmp_eq_u32 vcc, 1, v3\ns_nop 3\ns_and_b32 s%d, vcc_lo, s%d\ns_cmp_eq_u32 s%d, s%d\ns_cbranch_scc1 %s" % (sT0, smask, sT0, smask, ok))
    e("s_add_u32 s%d, s%d, 1\ns_cmp_lt_u32 s%d, %d\ns_cbranch_scc1 %s" % (sSPIN, sSPIN, sSPIN, 4*SPIN_MAX, lp))
    g.label(ok)
    g.lg = []

def conv_reduce(g, DEV):
    e = g.e
    Y = 96; P = vFB; U = vFB + 16
    e("s_lshl_b32 s%d, s%d, 12\ns_add_u32 s%d, s%d, %d\nv_add_u32 v2, s%d, v%d" % (sT0, sHW, sT0, sT0, CVX, sT0, vL16))
    for k in range(4):
        g.ds("ds_read_b128 %s, v2 offset:%d" % (vr(P+4*k, 4), 1024*k), "red")
    e("v_and_b32 v4, 15, v1\nv_lshrrev_b32 v5, 4, v1\nv_lshlrev_b32 v4, 5, v4\nv_lshl_add_u32 v4, v5, 3, v4")
    e("s_mul_i32 s%d, s%d, %d\ns_lshl_b32 s%d, s%d, 11\ns_sub_u32 s%d, s%d, s%d\ns_add_u32 s%d, s%d, %d\nv_sub_u32 v5, s%d, v4" %
      (sT1, sCH, CV_US, sT2, sSH, sT1, sT1, sT2, sT1, sT1, CVU + 4088 - 1536, sT1))
    for k in range(4):
        g.ds("ds_read_b64 %s, v5 offset:%d" % (vr(U+2*k, 2), 512*(3-k)), "red")
    e("v_add_u32 v4, s%d, v4" % sT0)
    e("s_lshl_b32 s%d, s%d, 1\ns_add_u32 s%d, s%d, s%d\ns_lshl_b32 s%d, s%d, 12" % (sT0, sCP, sT0, sT0, sCH, sT1, sT0))
    e("s_add_u32 s%d, s%d, s%d\ns_add_u32 s%d, s%d, %d" % (sT1, sT1, sT2, sT1, sT1, WS_Y2))
    e("s_mul_i32 s%d, s%d, 896\ns_add_u32 s%d, s%d, s%d\ns_lshl_b32 s%d, s%d, 6\ns_add_u32 s%d, s%d, %d" % (sH0, sSH, sH0, sH0, sT0, sH0, sH0, sH0, sH0, WS_F3))
    g.wait_lg("red")
    for i in range(16): e("v_add_f32 v%d, v%d, v%d" % (Y+i, Y+i, P+i))
    for k in range(4):
        for i in range(4):
            ee = 3 - i
            if ee % 2 == 0: e("v_lshlrev_b32 v%d, 16, v%d" % (P+4*k+i, U+2*k + ee//2))
            else: e("v_and_b32 v%d, 0xffff0000, v%d" % (P+4*k+i, U+2*k + ee//2))
    for i in range(16):
        rnd(g, Y+i, Y+i)
        e("v_mul_f32 v%d, s%d, v%d" % (P+i, sDV, P+i))
    for i in range(16): rnd(g, P+i, P+i)
    for i in range(16): e("v_add_f32 v%d, v%d, v%d" % (Y+i, Y+i, P+i))
    for k in range(4):
        e("v_cvt_pk_bf16_f32 v%d, v%d, v%d\nv_cvt_pk_bf16_f32 v%d, v%d, v%d" % (P+2*k, Y+4*k, Y+4*k+1, P+2*k+1, Y+4*k+2, Y+4*k+3))
        g.ds("ds_write_b64 v4, %s offset:%d" % (vr(P+2*k, 2), 512*k))
    g.wait_lg_all()
    for r in range(2):
        g.ds("ds_read_b128 %s, v2 offset:%d" % (vr(Y+4*r, 4), 1024*r), "yl")
    g.wait_lg_all()
    for r in range(2):
        g.vmem("buffer_store_dwordx4 %s, v%d, %s, s%d offen offset:%d sc1" % (vr(Y+4*r, 4), vL16, srd4(SRD_WS), sT1, 1024*r), "y2st")
    lds_signal(g, 16)

def main_wg(g, DEV):
    e = g.e
    e("s_sub_u32 s%d, s2, 32" % sM)
    e("s_and_b32 s%d, s%d, 7\ns_lshr_b32 s%d, s%d, 3" % (sT0, sM, sT1, sM))
    e("s_mul_i32 s%d, s%d, 37\ns_lshr_b32 s%d, s%d, 8" % (sT2, sT1, sT2, sT2))
    e("s_mul_i32 s%d, s%d, 7\ns_sub_u32 s%d, s%d, s%d" % (sT3, sT2, sDB, sT1, sT3))
    e("s_lshr_b32 s%d, s%d, 1\ns_lshl_b32 s%d, s%d, 2\ns_add_u32 s%d, s%d, s%d" % (sRB, sT0, sRB, sRB, sRB, sRB, sT2))
    e("s_and_b32 s%d, s%d, 1\ns_mul_i32 s%d, s%d, 7\ns_add_u32 s%d, s%d, s%d" % (sFC, sT0, sFC, sFC, sFC, sFC, sDB))
    e("s_lshl_b32 s%d, s%d, 2\ns_add_u32 s%d, s%d, s%d" % (sSB, sT0, sSB, sSB, sT2))
    e("s_mul_i32 s%d, s%d, 28\ns_add_u32 s%d, s%d, s%d" % (sT3, sT0, sT3, sT3, sT1))
    e("s_and_b32 s%d, s%d, 1" % (sSH, sW))
    e("s_cmp_lt_u32 s%d, 4\ns_cbranch_scc1 L_ROLE_M\ns_cmp_ge_u32 s%d, 6\ns_cbranch_scc1 L_ROLE_A" % (sW, sW))
    nb = {}
    role_D(g, DEV, nb)
    g.vm = []; g.lg = []
    g.label("L_ROLE_A")
    role_A(g, DEV, nb)
    role_H(g, DEV, nb)
    e("s_branch L_G2")
    g.vm = []; g.lg = []
    g.label("L_ROLE_M")
    role_M(g, DEV, nb)
    assert nb["D"] == nb["A"], nb
    assert nb["A"] + nb["H"] == nb["M"], nb
    g.vm = []; g.lg = []
    g.label("L_G2")
    g2(g, DEV)

HK = 192
F0ST = 10
def h_stage_code(g, st, w2, bar):
    if st == 11:
        w2.issue(0); w2.issue(1); w2.issue(2)

def hcopies(g, D0, addr, off):
    e = g.e
    T = vFB
    for i in range(5):
        e("v_alignbit_b32 v%d, v%d, v%d, 16" % (T+i, D0[i+1], D0[i]))
    for i in range(4):
        e("v_mov_b32 v%d, v%d\nv_mov_b32 v%d, v%d\nv_mov_b32 v%d, v%d" % (T+6+i, D0[i], T+10+i, D0[i+1], T+14+i, T+1+i))
    g.ds("ds_write_b128 v%d, %s offset:%d" % (addr, vr(T+6, 4), off))
    g.ds("ds_write_b128 v%d, %s offset:%d" % (addr, vr(T, 4), off+CSTR))
    g.ds("ds_write_b128 v%d, %s offset:%d" % (addr, vr(T+10, 4), off+2*CSTR))
    g.ds("ds_write_b128 v%d, %s offset:%d" % (addr, vr(T+14, 4), off+3*CSTR))
    g.wait_lg_all()

def h_setup(g):
    e = g.e
    e("s_sub_u32 s%d, s%d, 4\ns_lshl_b32 s%d, s%d, 11" % (sHW, sW, sW2M0, sHW))

def role_D(g, DEV, nb):
    e = g.e
    n = 0
    e("v_lshrrev_b32 v2, 2, v1\nv_lshrrev_b32 v3, 4, v1\nv_xor_b32 v4, v1, v3\nv_and_b32 v4, 3, v4")
    e("s_lshl_b32 s%d, s%d, 7\ns_lshl_b32 s%d, s%d, 6\ns_add_u32 s%d, s%d, s%d" % (sT0, sRB, sT1, sSH, sT0, sT0, sT1))
    e("v_add_u32 v2, s%d, v2\nv_mul_u32_u24 v2, 896, v2\nv_lshl_add_u32 v%d, v4, 4, v2" % (sT0, vXD))
    e("v_bfe_u32 v5, v1, 1, 3\nv_xor_b32 v5, v5, v3\nv_and_b32 v6, 1, v1\nv_lshl_or_b32 v5, v5, 1, v6")
    e("s_lshl_b32 s%d, s%d, 4\nv_add_u32 v6, s%d, v3\nv_mul_u32_u24 v6, 3584, v6" % (sT0, sSH, sT0))
    e("s_lshl_b32 s%d, s%d, 8\nv_lshl_add_u32 v5, v5, 4, v6\nv_add_u32 v%d, s%d, v5\nv_xor_b32 v%d, 128, v%d" % (sT0, sFC, vW1D, sT0, vW3D, vW1D))
    e("s_waitcnt lgkmcnt(0)")
    e("s_lshl_b32 s%d, s%d, 12" % (sDM0, sSH))
    srd(g, SRD_X, P_Q, S*D*2)
    srd(g, SRD_K, P_W1, D*F*2)
    srd(g, SRD_V, P_W3, D*F*2)
    e("s_add_u32 s%d, s%d, s%d\ns_sub_u32 s%d, s%d, 14\ns_cmp_ge_u32 s%d, 14\ns_cselect_b32 s%d, s%d, s%d" % (sT0, sRB, sFC, sT1, sT0, sT0, sT0, sT1, sT0))
    e("s_sub_u32 s%d, s%d, 14\ns_cmp_ge_u32 s%d, 14\ns_cselect_b32 s%d, s%d, s%d" % (sT1, sT0, sT0, sT0, sT1, sT0))
    if OPT.get("norot"): e("s_mov_b32 s%d, 0" % sT0)
    e("s_lshl_b32 s%d, s%d, 6\ns_mul_i32 s%d, s%d, 114688" % (sSOX, sT0, sSOW, sT0))
    def dma(stage):
        slot = stage % NSLOT
        for part, (vo, sr_, so) in enumerate(((vXD, SRD_X, sSOX), (vW1D, SRD_K, sSOW), (vW3D, SRD_V, sSOW))):
            for q in range(4):
                e("s_add_u32 m0, s%d, %d\ns_add_u32 s%d, s%d, %d" % (sDM0, slot*SLOT + part*8192 + q*1024, sT0, so, q*14336))
                g.vmem("buffer_load_dwordx4 v%d, %s, s%d offen lds" % (vo, srd4(sr_), sT0), "g1_%d" % stage)
        e("s_add_u32 s%d, s%d, 64\ns_add_u32 s%d, s%d, 114688\ns_cmp_ge_u32 s%d, 896\ns_cselect_b32 s%d, 0, s%d\ns_cselect_b32 s%d, 0, s%d" % (sSOX, sSOX, sSOW, sSOW, sSOX, sSOX, sSOX, sSOW, sSOW))
    NI = int(OPT.get("ninit", 2))
    for st in range(NI): dma(st)
    nxt = NI
    h_setup(g)
    common_setup(g)
    stamp(g, 0, DEV)
    w2 = W2Stream(g, 8192)
    g.wait_vm("g1_0")
    e("s_barrier"); n += 1
    if nxt < NSLOT: dma(nxt); nxt += 1
    for st in range(NST-1):
        g.wait_vm("g1_%d" % (st+1))
        g.wait_lg_all()
        e("s_barrier"); n += 1
        k = 0
        while nxt < NST and nxt <= st + NSLOT - 1 and k < 2:
            dma(nxt); nxt += 1; k += 1
        h_stage_code(g, st, w2, None)
    nb["D"] = n
    nb["w2D"] = (w2.dma, w2.rd, list(w2.free), dict(w2.pos), list(g.vm), list(g.lg))
    e("s_branch L_ROLE_H")

def role_A(g, DEV, nb):
    e = g.e
    n = 0
    e("s_waitcnt lgkmcnt(0)")
    srd(g, SRD_X, P_Q, S*D*2)
    srd(g, SRD_K, P_W1, D*F*2)
    srd(g, SRD_V, P_W3, D*F*2)
    e("s_lshr_b32 s%d, s%d, 3\ns_lshl_b32 s%d, s%d, 1\ns_add_u32 s%d, s%d, s%d" % (sLW, sM, sLW, sLW, sLW, sLW, sSH))
    if OPT.get("pf"):
        R0 = 32*(NSLOT-1)
        nW = ((448-R0)*28 + 63)//64
        e("s_lshl_b32 s%d, s%d, 1\ns_add_u32 s%d, s%d, s%d\nv_lshlrev_b32 v2, 7, v1" % (sT0, sM, sT0, sT0, sSH))
        l1 = g.newlab("L_PM"); l2 = g.newlab("L_PM"); l3 = g.newlab("L_PM")
        e("s_cmp_ge_u32 s%d, %d\ns_cbranch_scc1 %s" % (sT0, 2*nW, l2))
        e("s_lshl_b32 s%d, s%d, 13\ns_add_u32 s%d, s%d, %d\ns_cmp_eq_u32 s%d, 1\ns_cbranch_scc1 %s" % (sT1, sM, sT1, sT1, R0*3584, sSH, l1))
        e("buffer_load_dword v254, v2, %s, s%d offen\ns_branch %s" % (srd4(SRD_K), sT1, l3))
        g.label(l1)
        e("buffer_load_dword v254, v2, %s, s%d offen\ns_branch %s" % (srd4(SRD_V), sT1, l3))
        g.label(l2)
        e("s_sub_u32 s%d, s%d, %d\ns_lshl_b32 s%d, s%d, 13" % (sT1, sT0, 2*nW, sT1, sT1))
        e("buffer_load_dword v254, v2, %s, s%d offen\ns_add_u32 s%d, s%d, %d" % (srd4(SRD_X), sT1, sT1, sT1, (448-2*nW)*8192))
        e("buffer_load_dword v253, v2, %s, s%d offen" % (srd4(SRD_X), sT1))
        g.label(l3)
    srd(g, SRD_K, P_K, S*D*2)
    srd(g, SRD_V, P_V, S*D*2)
    h_setup(g)
    common_setup(g)
    e("v_xor_b32 v6, v6, v3\nv_lshl_add_u32 v8, v6, 6, v7\ns_lshl_b32 s%d, s%d, 12\ns_add_u32 s%d, s%d, %d\nv_add_u32 v%d, s%d, v8" % (sT0, sSH, sT0, sT0, T_K + 512, vTA, sT0))
    e("s_mul_i32 s%d, s%d, %d\nv_add_u32 v10, s%d, v9\nv_subrev_u32 v11, %d, v10" % (sT0, sSB, 64*896, sT0, 8*896))
    e("v_mov_b32 v2, 0\nv_add_u32 v3, %d, v%d\nds_write_b32 v3, v2\ns_waitcnt lgkmcnt(0)" % (LFL, vTMP))
    stamp(g, 0, DEV)
    w2 = W2Stream(g, 8192)
    flag_load = "buffer_load_dword v%d, v%d, %s, 0 offen sc1" % (vFLG, vTMP, srd4(SRD_DBG))
    f1_load = "buffer_load_dword v%d, v%d, %s, s%d offen sc1" % (vFLG, vTMP+2, srd4(SRD_WS), sT3)
    def chk_lo():
        e("v_cmp_ne_u32 vcc, 0, v%d\ns_nop 3\ns_cmp_eq_u32 vcc_lo, -1" % vFLG)
    def chk_hi():
        e("v_cmp_ne_u32 vcc, 0, v%d\ns_nop 3\ns_cmp_eq_u32 vcc_hi, -1" % vFLG)
    def chk_lo1():
        e("v_cmp_eq_u32 vcc, 1, v%d\ns_nop 3\ns_cmp_eq_u32 vcc_lo, -1" % vFLG)
    vT = 64
    def t_loads():
        lv = g.newlab("L_TV"); lj = g.newlab("L_TJ")
        e("s_cmp_eq_u32 s%d, 1\ns_cbranch_scc1 %s" % (sSH, lv))
        e("s_mov_b32 m0, %d\ns_nop 0\nbuffer_load_dwordx4 v11, %s, 0 offen lds" % (T_K, srd4(SRD_K)))
        for q in range(8):
            e("s_mov_b32 m0, %d\ns_mov_b32 s%d, %d\nbuffer_load_dwordx4 v10, %s, s%d offen lds" % (T_K + 1024*(q+1), sT0, q*7168, srd4(SRD_K), sT0))
        e("s_branch %s" % lj)
        g.label(lv)
        for q in range(8):
            e("s_mov_b32 m0, %d\ns_mov_b32 s%d, %d\nbuffer_load_dwordx4 v10, %s, s%d offen lds" % (T_V + 1024*q, sT0, q*7168, srd4(SRD_V), sT0))
        g.label(lj)
        e("v_lshlrev_b32 v2, 3, v1\ns_lshl_b32 s%d, s%d, 9" % (sT0, sDB))
        g.vmem("buffer_load_dwordx2 %s, v2, %s, s%d offen" % (vr(vT+34, 2), srd4(SRD_SK), sT0), "tld")
    def hk_loads():
        e("s_lshl_b32 s%d, s%d, 1\ns_add_u32 s%d, s%d, s%d\ns_lshl_b32 s%d, s%d, 12" % (sT0, sCP, sT0, sT0, sSH, sT0, sT0))
        for r in range(4):
            g.vmem("buffer_load_dwordx4 %s, v%d, %s, s%d offen offset:%d" % (vr(HK+6*r, 4), vL16, srd4(SRD_SSM), sT0, 1024*r), "hk")
            g.vmem("buffer_load_dwordx2 %s, v%d, %s, s%d offen offset:%d" % (vr(HK+6*r+4, 2), vL16, srd4(SRD_SSM), sT0, 1024*r+16), "hk")
        e("v_cmp_eq_u32 vcc, 1, v1\nv_mov_b32 v2, 0x7000000\ns_nop 0\nv_cndmask_b32 v2, v2, 0, vcc")
        g.vmem("buffer_load_dwordx2 %s, v2, %s, s%d offen" % (vr(HK+24, 2), srd4(SRD_SSM), sT0), "hk")
    t_loads()
    HKST = int(OPT.get("hkst", 0))
    if HKST < 0: hk_loads()
    e("s_barrier"); n += 1
    T_RD = int(OPT.get("trd", 2)); T_ST = T_RD + 3; T_FL = T_ST + 2
    F1ST = 12
    def t_octet(r):
        for j in range(3):
            g.ds("ds_read_b64_tr_b16 %s, v%d offset:%d" % (vr(vT+2*j, 2), vTA, 1024*r + 512*j))
        for j in range(2):
            g.ds("ds_read_b64_tr_b16 %s, v%d offset:%d" % (vr(vT+6+2*j, 2), vTA, 1024*r + T_V - T_K - 512 + 512*j))
        g.wait_lg_all()
        KU = vT+10
        for i in range(1, 12):
            if i % 2 == 0: e("v_lshlrev_b32 v%d, 16, v%d" % (KU+i-1, vT+i//2))
            else: e("v_and_b32 v%d, 0xffff0000, v%d" % (KU+i-1, vT+i//2))
        for q in range(8): e("v_mul_f32 v%d, v%d, v%d" % (vT+22+q, KU+q, vT+39))
        for tap in (2, 1, 0):
            for q in range(8): e("v_fmac_f32 v%d, v%d, v%d" % (vT+22+q, KU+q+3-tap, vT+36+tap))
        for q in range(8):
            if q % 2 == 0: e("v_lshlrev_b32 v%d, 16, v%d" % (vT+10+q, vT+6+q//2))
            else: e("v_and_b32 v%d, 0xffff0000, v%d" % (vT+10+q, vT+6+q//2))
        for q in range(8): e("v_mul_f32 v%d, v%d, v%d" % (vT+22+q, vT+22+q, vT+10+q))
        pk = vT + 40
        for q in range(4): e("v_cvt_pk_bf16_f32 v%d, v%d, v%d" % (pk+q, vT+22+7-2*q, vT+22+6-2*q))
        e("v_xor_b32 v13, %d, v12" % (16*r))
        g.ds("ds_write_b128 v13, %s" % vr(pk, 4))
    for st in range(NST-1):
        if st == T_RD: g.wait_vm("tld")
        if st == T_FL: g.wait_vm("tst")
        if st == F0ST:
            lab = g.newlab("L_NP")
            e("s_cmp_lg_u32 s%d, 0\ns_cbranch_scc1 %s" % (sSH, lab))
            e("s_waitcnt vmcnt(0)"); poll_slow(g, f1_load, chk_lo1)
            g.label(lab)
        g.wait_lg_all()
        e("s_barrier"); n += 1
        if st == HKST: hk_loads()
        if st == T_RD:
            e("v_lshlrev_b32 v%d, 16, v%d\nv_and_b32 v%d, 0xffff0000, v%d\nv_lshlrev_b32 v%d, 16, v%d\nv_and_b32 v%d, 0xffff0000, v%d" %
              (vT+36, vT+34, vT+37, vT+34, vT+38, vT+35, vT+39, vT+35))
            e("s_lshl_b32 s%d, s%d, 2\ns_sub_u32 s%d, 7, s%d\nv_and_b32 v2, 7, v1\nv_xor_b32 v2, s%d, v2\nv_lshlrev_b32 v2, 4, v2\nv_lshl_add_u32 v2, v1, 7, v2\nv_add_u32 v12, %d, v2" % (sT0, sSH, sT0, sT0, sT0, T_U))
            t_octet(0)
        if st == T_RD + 1: t_octet(1); t_octet(2)
        if st == T_RD + 2: t_octet(3)
        if st == T_ST:
            e("v_lshrrev_b32 v2, 3, v1\nv_and_b32 v3, 7, v1\nv_xor_b32 v4, v2, v3\nv_lshlrev_b32 v4, 4, v4\nv_lshl_add_u32 v4, v2, 7, v4\ns_lshl_b32 s%d, s%d, 12\ns_add_u32 s%d, s%d, %d\nv_add_u32 v4, s%d, v4" % (sT0, sSH, sT0, sT0, T_U, sT0))
            for q in range(4): g.ds("ds_read_b128 %s, v4 offset:%d" % (vr(vT+4*q, 4), 1024*q))
            e("v_lshlrev_b32 v5, 12, v2\nv_lshl_add_u32 v5, v3, 4, v5")
            e("s_lshl_b32 s%d, s%d, 18\ns_lshl_b32 s%d, s%d, 17\ns_add_u32 s%d, s%d, s%d\ns_lshl_b32 s%d, s%d, 7\ns_sub_u32 s%d, s%d, s%d\ns_add_u32 s%d, s%d, %d" %
              (sT0, sDB, sT1, sSH, sT0, sT0, sT1, sT1, sSB, sT0, sT0, sT1, sT0, sT0, WS_UR + 3968))
            g.wait_lg_all()
            for q in range(4):
                g.vmem("buffer_store_dwordx4 %s, v5, %s, s%d offen sc1" % (vr(vT+4*q, 4), srd4(SRD_WS), sT0), "tst")
                if q < 3: e("s_add_u32 s%d, s%d, 32768" % (sT0, sT0))
            lab = g.newlab("L_NP")
            e("s_cmp_lg_u32 s%d, 0\ns_cbranch_scc1 %s" % (sSH, lab))
            e(flag_load)
            g.label(lab)
        if st == T_FL:
            lab = g.newlab("L_NOF1")
            e("s_cmp_lg_u32 s%d, 0\ns_cbranch_scc1 %s" % (sSH, lab))
            e("s_waitcnt vmcnt(0)")
            poll_slow(g, flag_load, chk_hi)
            e("s_lshl_b32 s%d, s%d, 5\ns_add_u32 s%d, s%d, s%d\ns_lshl_b32 s%d, s%d, 6\ns_add_u32 s%d, s%d, %d" % (sT0, sDB, sT0, sT0, sSB, sT0, sT0, sT0, sT0, WS_F1))
            e("v_mov_b32 v2, 1\nv_mov_b32 v3, 0\ns_mov_b64 exec, 1")
            e("buffer_store_dword v2, v3, %s, s%d offen sc1\ns_mov_b64 exec, -1" % (srd4(SRD_WS), sT0))
            g.label(lab)
        if st == F0ST - 1:
            lab = g.newlab("L_NP")
            e("s_mov_b32 s%d, %d\ns_cmp_lg_u32 s%d, 0\ns_cbranch_scc1 %s" % (sT3, WS_F1 + 7*2048, sSH, lab))
            e("s_mov_b32 exec_hi, 0\n" + f1_load + "\ns_mov_b64 exec, -1")
            g.label(lab)
        if st == 10:
            e("s_lshr_b32 s%d, s%d, 5\ns_lshl_b32 s%d, s%d, 11\ns_add_u32 s%d, s%d, %d" % (sT3, sCP, sT3, sT3, sT3, sT3, WS_F1))
            e("s_mov_b32 exec_hi, 0")
            g.vmem(f1_load, "f1")
            e("s_mov_b64 exec, -1")
            e("s_mul_i32 s%d, s%d, %d\ns_add_u32 s%d, s%d, %d\nv_add_u32 v14, s%d, v%d" % (sT0, sSH, CV_CH, sT0, sT0, CVB, sT0, vL16))
            g.wait_vm("hk")
            for r in range(2): hcopies(g, [HK+6*r+i for i in range(6)], 14, 32 + 1024*r)
        if st == 11:
            g.wait_vm("f1"); poll_slow(g, f1_load, chk_lo1)
            e("s_lshl_b32 s%d, s%d, 1\ns_add_u32 s%d, s%d, s%d\ns_lshl_b32 s%d, s%d, 12" % (sT0, sCP, sT0, sT0, sSH, sT0, sT0))
            for r in range(4):
                g.vmem("buffer_load_dwordx4 %s, v%d, %s, s%d offen offset:%d sc1" % (vr(vT+4*r, 4), vL16, srd4(SRD_WS), sT0, 1024*r), "ur")
            for r in range(2, 4): hcopies(g, [HK+6*r+i for i in range(6)], 14, 32 + 1024*r)
            e("v_mov_b32 v4, 0\ns_mov_b64 exec, 3")
            hcopies(g, [4, 4, 4, 4, HK+24, HK+25], 14, 0)
            e("s_mov_b64 exec, -1")
        h_stage_code(g, st, w2, None)
        if st == 12:
            e("s_mul_i32 s%d, s%d, %d\ns_add_u32 s%d, s%d, %d\nv_add_u32 v10, s%d, v%d" % (sT0, sSH, CV_US, sT0, sT0, CVU, sT0, vL16))
            e("v_mov_b32 v4, 0\nv_mov_b32 v5, 0\nv_mov_b32 v6, 0\nv_mov_b32 v7, 0\ns_mov_b64 exec, 0x3fffffff")
            g.ds("ds_write_b128 v10, v[4:7] offset:4096")
            e("s_mov_b64 exec, -1")
            g.wait_vm("ur")
            for r in range(4): g.ds("ds_write_b128 v10, %s offset:%d" % (vr(vT+4*r, 4), 1024*r))
    nb["A"] = n
    nb["w2A"] = w2
    dD = nb["w2D"]
    assert (w2.dma, w2.rd, list(w2.free), dict(w2.pos)) == dD[:4]
    g.vm = [t for t in g.vm if t in dD[4]]
    g.lg = [t for t in g.lg if t in dD[5]]

def role_H(g, DEV, nb):
    e = g.e
    n = 0
    w2 = nb["w2A"]
    g.label("L_ROLE_H")
    e("v_and_b32 v2, 15, v1\nv_lshrrev_b32 v3, 4, v1\nv_add_u32 v4, 1, v2\nv_and_b32 v5, 3, v4\nv_and_b32 v4, 28, v4")
    e("v_mul_u32_u24 v5, %d, v5\nv_lshl_add_u32 v5, v4, 1, v5\nv_lshl_add_u32 v5, v3, 4, v5" % CSTR)
    e("s_lshr_b32 s%d, s%d, 1\ns_mul_i32 s%d, s%d, %d\ns_lshl_b32 s%d, s%d, 8\ns_add_u32 s%d, s%d, s%d\ns_add_u32 s%d, s%d, %d" % (sT0, sHW, sT0, sT0, CV_CH, sT1, sSH, sT0, sT0, sT1, sT0, sT0, CVB))
    e("v_add_u32 v%d, s%d, v5" % (vFA, sT0))
    e("s_mul_i32 s%d, s%d, %d\ns_add_u32 s%d, s%d, s%d\ns_add_u32 s%d, s%d, %d" % (sT2, sCH, CV_US, sT0, sT2, sT1, sT0, sT0, CVU + 480))
    e("v_lshlrev_b32 v4, 4, v3\nv_lshlrev_b32 v5, 5, v2\nv_sub_u32 v4, v4, v5\nv_add_u32 v%d, s%d, v4" % (vGA, sT0))
    e("s_xor_b32 s%d, s%d, 1\ns_lshl_b32 s%d, s%d, 12\ns_add_u32 s%d, s%d, %d\nv_add_u32 v%d, s%d, v%d" % (sT0, sHW, sT0, sT0, sT0, sT0, CVX, vTMP+1, sT0, vL16))
    g.wait_lg_all()
    e("s_barrier"); n += 1
    stamp(g, 2, DEV)
    for _ in range(int(OPT.get("hpre", 6))): w2.read(); w2.refill()
    e("s_lshl_b32 s%d, 1, s%d" % (sT1, sHW))
    if not OPT.get("nowaitm"): lds_wait(g, 48, sT1)
    stamp(g, 1, DEV)
    CA = vACC
    slots = [vFB + 4*i for i in range(8)] + [vACC + 32 + 4*i for i in range(8)] + [vCV + 4*i for i in range(3)]
    ops = []
    for r in range(4):
        for m_ in range(8):
            prods = [(m_, b) for b in range(0, m_+1) if m_ + b <= 7] + [(a, m_) for a in range(0, m_) if a + m_ <= 7]
            for a, b in prods: ops.append((r, a, b))
    first = {}; last = {}
    for i, (r, a, b) in enumerate(ops):
        for key in (("F", r, a), ("G", r, b)):
            first.setdefault(key, i); last[key] = i
    order = sorted(first, key=lambda k: first[k])
    LEAD = int(OPT.get("lead", 10))
    free = list(slots); where = {}; nxt = 0
    acc_started = set(); acc_last = {}
    for i, (r, a, b) in enumerate(ops): acc_last[a+b] = i
    pend_wr = []
    def issue_reads(i):
        nonlocal nxt
        while nxt < len(order) and first[order[nxt]] <= i + LEAD and free and len(g.lg) <= 11:
            key = order[nxt]; reg = free.pop(0); where[key] = reg
            kind, r, x = key
            if kind == "F":
                o = 512*x + 64*r
                g.ds("ds_read_b64 %s, v%d offset:%d" % (vr(reg, 2), vFA, o), str(key))
                g.ds("ds_read_b64 %s, v%d offset:%d" % (vr(reg+2, 2), vFA, o+8), str(key))
            else:
                g.ds("ds_read_b128 %s, v%d offset:%d" % (vr(reg, 4), vGA, 512*(7-x) + 64*r), str(key))
            nxt += 1
    for i, (r, a, b) in enumerate(ops):
        issue_reads(i)
        kf, kg = ("F", r, a), ("G", r, b)
        assert kf in where and kg in where, (i, kf, kg)
        g.wait_lg(str(kf)); g.wait_lg(str(kg))
        t = a + b
        e("v_mfma_f32_16x16x32_bf16 %s, %s, %s, %s" % (vr(CA+4*t, 4), vr(where[kf], 4), vr(where[kg], 4), vr(CA+4*t, 4) if t in acc_started else "0"))
        acc_started.add(t)
        for key in (kf, kg):
            if last[key] == i: free.append(where[key])
        if i % 14 == 6: w2.read()
        if i % 14 == 10: w2.refill()
    e("s_nop 7")
    l1 = g.newlab("L_X1"); l2 = g.newlab("L_X2")
    e("s_cmp_eq_u32 s%d, 1\ns_cbranch_scc1 %s" % (sSH, l1))
    for k in range(4): e("ds_write_b128 v%d, %s offset:%d" % (vTMP+1, vr(CA+16+4*k, 4), 1024*k))
    for i in range(16): e("v_mov_b32 v%d, v%d" % (96+i, CA+i))
    e("s_branch %s" % l2)
    g.label(l1)
    for k in range(4): e("ds_write_b128 v%d, %s offset:%d" % (vTMP+1, vr(CA+4*k, 4), 1024*k))
    for i in range(16): e("v_mov_b32 v%d, v%d" % (96+i, CA+16+i))
    g.label(l2)
    stamp(g, 3, DEV)
    lds_signal(g, 0)
    e("s_lshl_b32 s%d, s%d, 1\ns_lshl_b32 s%d, 3, s%d" % (sT1, sCH, sT1, sT1))
    lds_wait(g, 0, sT1)
    stamp(g, 4, DEV)
    conv_reduce(g, DEV)
    print("H w2 state after conv", w2.dma, w2.rd, file=sys.stderr)
    for _ in range(3): w2.read(); w2.refill()
    g.wait_vm("y2st")
    e("v_mov_b32 v4, 1\nv_mul_u32_u24 v5, %d, v1\ns_mov_b64 exec, 3" % (448*64))
    g.vmem("buffer_store_dword v4, v5, %s, s%d offen sc1" % (srd4(SRD_WS), sH0), "fl")
    e("s_mov_b64 exec, -1")
    w2.finish()
    g.wait_lg_all()
    lds_signal(g, 32)
    nb["H"] = n

def role_M(g, DEV, nb):
    e = g.e
    n = 0
    sFH = sHW
    e("s_setprio 2")
    e("s_lshr_b32 s%d, s%d, 1\ns_lshl_b32 s%d, s%d, 14\ns_add_u32 s%d, s%d, %d" % (sFH, sW, sT0, sW, sT1, sT0, W2M))
    e("s_waitcnt lgkmcnt(0)")
    e("s_mov_b32 s%d, s%d" % (63, sT1))
    e("s_mov_b32 s%d, s63" % sW2M0)
    common_setup(g)
    e("v_and_b32 v2, 31, v1\nv_lshrrev_b32 v3, 5, v1\nv_bfe_u32 v4, v1, 2, 2\nv_xor_b32 v5, v3, v4")
    e("s_lshl_b32 s%d, s%d, 12" % (sT0, sSH))
    e("v_lshlrev_b32 v6, 6, v2\nv_lshl_add_u32 v6, v5, 4, v6\nv_add_u32 v%d, s%d, v6\nv_xor_b32 v%d, 32, v%d" % (vXA+0, sT0, vXA+1, vXA+0))
    e("v_bfe_u32 v2, v1, 4, 1\nv_and_b32 v5, 3, v1")
    e("v_lshl_or_b32 v6, v2, 2, v4\ns_lshl_b32 s%d, s%d, 2\nv_xor_b32 v6, s%d, v6" % (sT0, sFH, sT0))
    e("v_lshlrev_b32 v6, 5, v6\nv_lshl_add_u32 v6, v5, 3, v6\nv_lshl_add_u32 v6, v4, 8, v6\nv_lshl_add_u32 v6, v3, 11, v6\nv_lshl_add_u32 v6, v2, 13, v6")
    e("v_add_u32 v%d, 8192, v6" % vWA)
    for t in range(1, 4): e("v_xor_b32 v%d, %d, v%d" % (vWA+t, 32*t, vWA))
    e("s_lshl_b32 s%d, s%d, 2\ns_lshl_b32 s%d, s%d, 1\ns_add_u32 s%d, s%d, s%d" % (sT0, sRB, sT1, sSH, sT0, sT0, sT1))
    e("s_lshl_b32 s%d, s%d, 3\ns_lshl_b32 s%d, s%d, 2\ns_add_u32 s%d, s%d, s%d" % (sT2, sFC, sT1, sFH, sT2, sT2, sT1))
    e("s_mul_i32 s%d, s%d, 112\ns_add_u32 s%d, s%d, s%d\ns_lshl_b32 s%d, s%d, 10\ns_add_u32 s%d, s%d, %d\ns_add_u32 s%d, s%d, %d" %
      (sH0, sT0, sH0, sH0, sT2, sH0, sH0, sH0, sH0, WS_H, sH1, sH0, 112*1024))
    vCSA = vFB; vNM = vFB + 16
    for t in range(4): e("v_mov_b32 v%d, 0\nv_mov_b32 v%d, 0" % (vCSA+4*t+2, vCSA+4*t+3))
    e("v_mov_b32 v%d, 0\nv_mov_b32 v%d, 0\nv_mov_b32 v%d, 0\nv_mov_b32 v%d, 0" % (vNM+2, vNM+3, vNM+6, vNM+7))
    e("v_and_b32 v2, 31, v1\nv_lshlrev_b32 v56, 4, v2\nv_bfe_u32 v3, v1, 4, 1\nv_and_b32 v4, 15, v1\nv_mul_u32_u24 v3, 1792, v3\nv_add_lshl_u32 v57, v3, v4, 3")
    e("s_lshl_b32 s%d, s%d, 7\ns_lshl_b32 s%d, s%d, 6\ns_add_u32 s%d, s%d, s%d\ns_lshl_b32 s%d, s%d, 4\ns_add_u32 s%d, s%d, %d" % (sT2, sRB, sT1, sSH, sT2, sT2, sT1, sT2, sT2, sT2, sT2, WS_ST))
    e("s_lshl_b32 s%d, s%d, 7\ns_lshl_b32 s%d, s%d, 6\ns_add_u32 s%d, s%d, s%d\ns_lshl_b32 s%d, s%d, 3\ns_add_u32 s%d, s%d, %d" % (sT3, sFC, sT1, sFH, sT3, sT3, sT1, sT3, sT3, sT3, sT3, WS_CS))
    stamp(g, 0, DEV)
    def reads(stage, kidx):
        slot = stage % NSLOT
        fb = vMF + 24*kidx
        pre = []
        if stage > 0:
            delta = (SLOT if slot != 0 else -(NSLOT-1)*SLOT) & 0xffffffff
            pre.append("v_add_u32 v%d, %d, v%d" % (vXA+kidx, delta, vXA+kidx))
            if kidx == 0:
                for t in range(4): pre.append("v_add_u32 v%d, %d, v%d" % (vWA+t, delta, vWA+t))
        ko = kidx*4096
        R = ["ds_read_b128 %s, v%d" % (vr(fb, 4), vXA+kidx)]
        for t in range(4):
            R.append("ds_read_b64_tr_b16 %s, v%d offset:%d" % (vr(fb+8+4*t, 2), vWA+t, ko))
            R.append("ds_read_b64_tr_b16 %s, v%d offset:%d" % (vr(fb+10+4*t, 2), vWA+t, ko+1024))
            if t == 0: R.append("ds_read_b128 %s, v%d offset:2048" % (vr(fb+4, 4), vXA+kidx))
        return pre, R
    e("s_barrier"); n += 1
    stamp(g, 1, DEV)
    pre, R = reads(0, 0)
    for r in R: g.ds(r)
    for st in range(NST):
        for kidx in range(2):
            fb = vMF + 24*kidx
            first = (st == 0 and kidx == 0)
            if kidx == 0: pre, R = reads(st, 1)
            elif st + 1 < NST: pre, R = reads(st+1, 0)
            else: pre, R = [], []
            if OPT.get("g1st") and kidx == 0 and st % 2 == 0 and st > 0: stamp(g, 1 + st//2, DEV, True)
            g.wait_lg_all()
            k = 0
            for t in range(4):
                for stl in range(2):
                    mfma32(g, vACC + 32*t + 16*stl, fb+8+4*t, fb+4*stl, first)
                    if k == 0:
                        for p in pre: e(p)
                    for r in R[2*k:2*k+2]: g.ds(r)
                    k += 1
                    if k == 6 and kidx == 0 and st + 1 < NST:
                        e("s_barrier"); n += 1
                        if st == F0ST:
                            g.vmem("buffer_load_dwordx4 v[8:11], v56, %s, s%d offen sc1" % (srd4(SRD_WS), sT2), "par")
                            g.vmem("buffer_load_dwordx4 v[12:15], v56, %s, s%d offen offset:512 sc1" % (srd4(SRD_WS), sT2), "par")
                    if k == 2 and kidx == 0 and st == NST-1:
                        g.wait_vm("par")
                        e("v_cmp_gt_u32 vcc, 32, v1\ns_nop 1")
                        for tt, b in ((0, 8), (1, 12)):
                            e("v_cndmask_b32 v%d, 0, v%d, vcc\nv_and_b32 v%d, 0xffff, v%d" % (vNM+4*tt, b, vNM+4*tt+1, vNM+4*tt))
                            e("v_mov_b32 v%d, v%d\nv_mov_b32 v%d, v%d" % (b, b+1, b+3, b+2))
                    if k == 7 and kidx == 0 and st == F0ST:
                        for tt in range(4):
                            g.vmem("buffer_load_dwordx2 %s, v57, %s, s%d offen offset:%d sc1" % (vr(vCSA+4*tt, 2), srd4(SRD_WS), sT3, 128*tt), "par")
    if OPT.get("g1st"): stamp(g, 8, DEV, True)
    for t in range(4):
        for stl in range(2):
            mfma32(g, vACC + 32*t + 16*stl, vCSA+4*t, vNM+4*stl)
    e("s_barrier"); n += 1
    stamp(g, 2, DEV)
    e("s_nop 7")
    if OPT.get("morenop"): e("s_nop 15\n" * 12)
    for t in range(4):
        if OPT.get("est"): stamp(g, 4+t, DEV, True)
        for stl in range(2):
            acc = vACC + 32*t + 16*stl
            b = (8, 12)[stl]
            for j in range(0, 8, 2):
                e("v_pk_mul_f32 %s, %s, %s" % (vr(acc+8+j, 2), vr(acc+j, 2), vr(acc+8+j, 2)))
                e("v_pk_mul_f32 %s, %s, %s" % (vr(acc+j, 2), vr(acc+j, 2), vr(b, 2)))
            TO = [1, 0, 3, 2, 5, 4, 7, 6] if not OPT.get("tord") else list(range(8))
            for j in TO:
                e("v_exp_f32 v%d, v%d" % (acc+j, acc+j))
            for j in range(0, 8, 2):
                e("v_pk_fma_f32 %s, %s, %s, %s" % (vr(acc+j, 2), vr(acc+j, 2), vr(b+2, 2), vr(b+2, 2)))
            for j in TO:
                e("v_rcp_f32 v%d, v%d" % (acc+j, acc+j))
            for j in range(0, 8, 2):
                e("v_pk_mul_f32 %s, %s, %s" % (vr(acc+8+j, 2), vr(acc+j, 2), vr(acc+8+j, 2)))
            for q in range(4):
                e("v_cvt_pk_bf16_f32 v%d, v%d, v%d" % (acc+q, acc+8+2*q, acc+9+2*q))
            if not OPT.get("latest"): g.vmem("buffer_store_dwordx4 %s, v%d, %s, s%d offen offset:%d sc1" % (vr(acc, 4), vL16, srd4(SRD_WS), (sH0, sH1)[stl], t*1024).replace(" sc1", "" if OPT.get("hstplain") else " sc1"), "hst") if False else g.vmem(("buffer_store_dwordx4 %s, v%d, %s, s%d offen offset:%d sc1" % (vr(acc, 4), vL16, srd4(SRD_WS), (sH0, sH1)[stl], t*1024)).replace(" sc1", "" if OPT.get("hstplain") else " sc1"), "hst")
    if OPT.get("latest"):
        if OPT.get("est"): stamp(g, 9, DEV, True)
        for t in range(4):
            for stl in range(2):
                g.vmem("buffer_store_dwordx4 %s, v%d, %s, s%d offen offset:%d sc1" % (vr(vACC + 32*t + 16*stl, 4), vL16, srd4(SRD_WS), (sH0, sH1)[stl], t*1024), "hst")
    stamp(g, 3, DEV)
    if OPT.get("est"): stamp(g, 8, DEV, True)
    e("s_setprio 0")
    e("s_lshl_b32 s%d, s%d, 2\ns_add_u32 s%d, s%d, %d\nv_mov_b32 v2, s%d\nv_mov_b32 v3, 1\ns_mov_b64 exec, 1\nds_write_b32 v2, v3\ns_mov_b64 exec, -1" % (sT0, sW, sT0, sT0, LFL + 48, sT0))
    w2 = W2Stream(g, 2048)
    for p in range(8): w2.issue(p)
    g.wait_vm("hst")
    e("s_lshl_b32 s%d, s%d, 1\ns_add_u32 s%d, s%d, s%d\ns_mul_i32 s%d, s%d, 14\ns_add_u32 s%d, s%d, s%d\ns_lshl_b32 s%d, s%d, 8" %
      (sT0, sRB, sT0, sT0, sSH, sT0, sT0, sT0, sT0, sFC, sT0, sT0))
    e("s_lshl_b32 s%d, s%d, 2\ns_add_u32 s%d, s%d, s%d\ns_add_u32 s%d, s%d, %d" % (sT1, sFH, sT0, sT0, sT1, sT0, sT0, WS_F2))
    e("v_mov_b32 v2, 1\nv_mov_b32 v3, 0\ns_mov_b64 exec, 1")
    g.vmem("buffer_store_dword v2, v3, %s, s%d offen sc1" % (srd4(SRD_WS), sT0), "fl")
    e("s_mov_b64 exec, -1")
    w2.finish()
    g.wait_lg_all()
    stamp(g, 4, DEV)
    nb["M"] = n

def g2(g, DEV):
    e = g.e
    stamp(g, 5, DEV)
    e("v_lshlrev_b32 v%d, 8, v1\ns_mul_i32 s%d, s%d, %d\ns_add_u32 s%d, s%d, %d" % (vTMP, sT3, sSB, 14*256, sT3, sT3, WS_F2))
    f2_load = "buffer_load_dwordx2 %s, v%d, %s, s%d offen sc1" % (vr(vCV, 2), vTMP, srd4(SRD_WS), sT3)
    g.vmem(f2_load, "f2")
    e("s_mul_i32 s%d, s%d, 224\ns_lshr_b32 s%d, s%d, 7\ns_add_u32 s%d, s%d, 223\ns_lshr_b32 s%d, s%d, 7" % (sT0, sW, sT1, sT0, sT0, sT0, sT0, sT0))
    e("s_sub_u32 s%d, s%d, s%d\ns_add_u32 s%d, s%d, 1\ns_bfm_b32 s%d, s%d, s%d" % (sT0, sT0, sT1, sT0, sT0, sH1, sT0, sT1))
    e("v_lshrrev_b32 v2, 3, v0\nv_and_b32 v3, 7, v0\ns_lshl_b32 s%d, s%d, 6\nv_add_u32 v4, s%d, v2" % (sT0, sSB, sT0))
    e("v_mul_u32_u24 v5, 896, v4\nv_lshl_add_u32 v5, v3, 4, v5\ns_lshl_b32 s%d, s%d, 7\nv_add_u32 v%d, s%d, v5" % (sT0, sDB, vXD, sT0))
    e("v_lshlrev_b32 v4, 4, v4\ns_mov_b32 s%d, %d" % (sT0, WS_ST))
    g.vmem("buffer_load_dwordx4 v[8:11], v%d, %s, 0 offen" % (vXD, srd4(SRD_X)), "ex")
    g.vmem("buffer_load_dwordx4 v[12:15], v4, %s, s%d offen sc1" % (srd4(SRD_WS), sT0), "ex")
    def chk_f2():
        e("v_and_b32 v%d, v%d, v%d" % (vCV, vCV, vCV+1))
        e("v_cmp_eq_u32 vcc, 1, v%d\ns_nop 3\ns_and_b32 s%d, vcc_lo, s%d\ns_cmp_eq_u32 s%d, s%d" % (vCV, sT0, sH1, sT0, sH1))
    g.wait_vm("f2")
    poll_slow(g, f2_load, chk_f2)
    stamp(g, 6, DEV)
    free = [vFB + 4*i for i in range(8)] + [vCV + 4*i for i in range(3)]
    seq = [(n, st) for n in range(14) for st in range(2)]
    hreg = {}
    nl = [0]
    def h_loads():
        while free and nl[0] < len(seq):
            i = nl[0]; n, st = seq[i]
            hreg[i] = free.pop(0)
            e("s_add_u32 s%d, s%d, s%d" % (sT0, (sHL0, sHL1)[st], sKH))
            g.vmem("buffer_load_dwordx4 %s, v%d, %s, s%d offen sc1" % (vr(hreg[i], 4), vL16, srd4(SRD_WS), sT0), "h%d" % i)
            if st == 1:
                e("s_add_u32 s%d, s%d, 1024\ns_cmp_ge_u32 s%d, %d\ns_cselect_b32 s%d, 0, s%d" % (sKH, sKH, sKH, 14*1024, sKH, sKH))
            nl[0] += 1
    h_loads()
    for i, (n, st) in enumerate(seq):
        g.wait_vm("h%d" % i)
        for dt in range(2):
            mfma32(g, vACC + 32*st + 16*dt, vW2 + 8*n + 4*dt, hreg[i], n == 0)
        free.append(hreg[i])
        if st == 1: free.extend([vW2 + 8*n, vW2 + 8*n + 4])
        h_loads()
    stamp(g, 7, DEV)
    lab = g.newlab("L_NW")
    e("s_cmp_lt_u32 s%d, 4\ns_cbranch_scc1 %s\ns_mov_b32 s%d, 15" % (sW, lab, sT1))
    lds_wait(g, 32, sT1)
    g.label(lab)
    e("v_and_b32 v5, 31, v1\nv_lshrrev_b32 v6, 5, v1\nv_and_b32 v7, 15, v1\nv_xor_b32 v6, v6, v7\nv_lshlrev_b32 v6, 4, v6\nv_lshl_add_u32 v6, v5, 8, v6")
    e("s_add_u32 s%d, s%d, 2\ns_and_b32 s%d, s%d, 7\ns_lshl_b32 s%d, s%d, 14\nv_add_u32 v6, s%d, v6" % (sT0, sW, sT0, sT0, sT0, sT0, sT0))
    for k in range(1, 8):
        e("v_xor_b32 v%d, %d, v6" % (vFB+k, 32*k))
    e("v_mov_b32 v%d, v6" % vFB)
    for st in range(2):
        for dt in range(2):
            for q in range(4):
                g.ds("ds_write_b128 v%d, %s offset:%d" % (vFB + 4*dt + q, vr(vACC + 32*st + 16*dt + 4*q, 4), st*8192))
    lab = g.newlab("L_NY")
    e("s_cmp_ge_u32 s%d, 4\ns_cbranch_scc1 %s" % (sW, lab))
    e("s_lshr_b32 s%d, s%d, 3\ns_mul_i32 s%d, s%d, 448\ns_lshl_b32 s%d, s%d, 6\ns_add_u32 s%d, s%d, s%d\ns_lshl_b32 s%d, s%d, 4\ns_add_u32 s%d, s%d, s%d\ns_lshl_b32 s%d, s%d, 6\ns_add_u32 s%d, s%d, %d" %
      (sT3, sSB, sT3, sT3, sT1, sDB, sT3, sT3, sT1, sT1, sW, sT3, sT3, sT1, sT3, sT3, sT3, sT3, WS_F3))
    f3_load = "s_mov_b64 exec, 0xffff\nbuffer_load_dword v%d, v%d, %s, s%d offen sc1\ns_mov_b64 exec, -1" % (vFLG, vTMP+2, srd4(SRD_WS), sT3)
    def chk_f3():
        e("v_cmp_eq_u32 vcc, 1, v%d\ns_nop 3\ns_and_b32 s%d, vcc_lo, 0xffff\ns_cmp_eq_u32 s%d, 0xffff" % (vFLG, sT0, sT0))
    e(f3_load + "\ns_waitcnt vmcnt(0)")
    poll_slow(g, f3_load, chk_f3)
    e("v_lshrrev_b32 v4, 3, v1\nv_and_b32 v5, 7, v1\nv_lshlrev_b32 v6, 12, v4\nv_lshl_add_u32 v6, v5, 4, v6")
    e("s_lshl_b32 s%d, s%d, 18\ns_lshl_b32 s%d, s%d, 7\ns_add_u32 s%d, s%d, s%d\ns_lshl_b32 s%d, s%d, 16\ns_add_u32 s%d, s%d, s%d\ns_add_u32 s%d, s%d, %d\ns_add_u32 s%d, s%d, 32768" %
      (sT0, sDB, sT1, sSB, sT0, sT0, sT1, sT1, sW, sT0, sT0, sT1, sT0, sT0, WS_Y2, sT1, sT0))
    e("buffer_load_dwordx4 %s, v6, %s, s%d offen sc1\nbuffer_load_dwordx4 %s, v6, %s, s%d offen sc1" % (vr(vCV, 4), srd4(SRD_WS), sT0, vr(vCV+4, 4), srd4(SRD_WS), sT1))
    e("s_lshl_b32 s%d, s%d, 1\nv_xor_b32 v7, s%d, v5\nv_lshlrev_b32 v7, 4, v7\nv_lshl_add_u32 v7, v5, 10, v7\nv_lshl_add_u32 v7, v4, 1, v7\nv_add_u32 v7, %d, v7\nv_xor_b32 v6, 16, v7" % (sT0, sW, sT0, G2_Y2))
    e("s_mov_b32 s%d, 15" % sT1)
    lds_wait(g, 16, sT1)
    e("s_waitcnt vmcnt(0)")
    for r in range(2):
        for i in range(4):
            e("ds_write_b16 v%d, v%d offset:%d" % ((7, 6)[r], vCV+4*r+i, 256*i))
            e("ds_write_b16_d16_hi v%d, v%d offset:%d" % ((7, 6)[r], vCV+4*r+i, 256*i + 128))
    g.label(lab)
    g.wait_lg_all()
    e("s_barrier")
    e("v_and_b32 v3, 7, v0")
    stamp(g, 8, DEV)
    e("v_lshrrev_b32 v2, 3, v0\nv_and_b32 v5, 15, v2\nv_lshlrev_b32 v6, 1, v3\nv_xor_b32 v6, v6, v5\nv_lshlrev_b32 v6, 4, v6\nv_lshl_add_u32 v6, v2, 8, v6\nv_xor_b32 v7, 16, v6")
    e("v_add_u32 v%d, 0x10000, v6\nv_add_u32 v%d, 0x10000, v7" % (vTMP, vTMP+1))
    PR = vACC
    for p in range(8):
        a0, a1 = (6, 7) if p < 4 else (vTMP, vTMP+1)
        g.ds("ds_read_b128 %s, v%d offset:%d" % (vr(PR+8*p, 4), a0, (p % 4)*16384), "p%d" % p)
        g.ds("ds_read_b128 %s, v%d offset:%d" % (vr(PR+8*p+4, 4), a1, (p % 4)*16384), "p%d" % p)
        if p == 5:
            g.wait_lg("p1")
            for i in range(8): e("v_add_f32 v%d, v%d, v%d" % (PR+i, PR+i, PR+8+i))
    e("v_lshrrev_b32 v5, 3, v2\nv_xor_b32 v5, v5, v3\nv_lshlrev_b32 v5, 4, v5\nv_lshl_add_u32 v5, v2, 7, v5\nv_add_u32 v5, %d, v5" % G2_Y2)
    g.wait_lg("p3")
    g.ds("ds_read_b128 %s, v5" % vr(vCV, 4), "y2")
    for i in range(8): e("v_add_f32 v%d, v%d, v%d" % (PR+16+i, PR+16+i, PR+24+i))
    g.wait_lg("p5")
    for i in range(8): e("v_add_f32 v%d, v%d, v%d" % (PR+32+i, PR+32+i, PR+40+i))
    for i in range(8): e("v_add_f32 v%d, v%d, v%d" % (PR+i, PR+i, PR+16+i))
    g.wait_lg("p7")
    for i in range(8): e("v_add_f32 v%d, v%d, v%d" % (PR+48+i, PR+48+i, PR+56+i))
    for i in range(8): e("v_add_f32 v%d, v%d, v%d" % (PR+32+i, PR+32+i, PR+48+i))
    for i in range(8): e("v_add_f32 v%d, v%d, v%d" % (PR+i, PR+i, PR+32+i))
    for i in range(8): rnd(g, PR+i, PR+i)
    for i in range(8): e("v_mul_f32 v%d, 0xbfb8aa3b, v%d" % (PR+8+i, PR+i))
    for i in range(8): e("v_exp_f32 v%d, v%d" % (PR+8+i, PR+8+i))
    g.wait_vm("ex")
    g.wait_lg_all()
    X = PR+16; Y = PR+24; XN = PR+32
    for i in range(8):
        if i % 2 == 0: e("v_lshlrev_b32 v%d, 16, v%d\nv_lshlrev_b32 v%d, 16, v%d" % (X+i, 8+i//2, Y+i, vCV+i//2))
        else: e("v_and_b32 v%d, 0xffff0000, v%d\nv_and_b32 v%d, 0xffff0000, v%d" % (X+i, 8+i//2, Y+i, vCV+i//2))
    e("v_lshlrev_b32 v12, 16, v12")
    for i in range(8): e("v_add_f32 v%d, 1.0, v%d\nv_add_f32 v%d, v%d, v12" % (PR+8+i, PR+8+i, XN+i, X+i))
    for i in range(8): e("v_rcp_f32 v%d, v%d" % (PR+8+i, PR+8+i))
    for i in range(8): rnd(g, XN+i, XN+i)
    for i in range(8): e("v_mul_f32 v%d, v%d, v15\nv_mul_f32 v%d, v%d, v%d" % (XN+i, XN+i, PR+i, PR+i, PR+8+i))
    for i in range(8):
        rnd(g, XN+i, XN+i); rnd(g, PR+i, PR+i)
    for i in range(8): e("v_mul_f32 v%d, v%d, v%d" % (XN+i, XN+i, Y+i))
    for i in range(8): rnd(g, XN+i, XN+i)
    for i in range(8): e("v_mul_f32 v%d, v%d, v%d" % (XN+i, XN+i, PR+i))
    for i in range(8): rnd(g, XN+i, XN+i)
    for i in range(8): e("v_add_f32 v%d, v%d, v%d" % (XN+i, XN+i, X+i))
    for q in range(4): e("v_cvt_pk_bf16_f32 v%d, v%d, v%d" % (PR+q, XN+2*q, XN+2*q+1))
    g.vmem("buffer_store_dwordx4 %s, v%d, %s, 0 offen" % (vr(PR, 4), vXD, srd4(SRD_OUT)), "out")
    if DEV:
        g.wait_vm_all()
        stamp(g, 9, DEV)
        e("s_memrealtime s[62:63]\ns_waitcnt lgkmcnt(0)\ns_mov_b32 s101, s62")
        dump_stamps(g)

def service_wg(g, DEV):
    e = g.e
    OPT["_svc"] = 1
    if OPT.get("nosvc"): return
    LC = 0
    LS = 4096
    e("s_mov_b32 s%d, 0x3f803f80" % sONES)
    e("s_waitcnt lgkmcnt(0)")
    srd(g, SRD_WS, P_WS, WS_SIZE)
    srd(g, SRD_DBG, P_DBG, 256)
    srd(g, SRD_X, P_Q, S*D*2)
    e("s_cmp_lt_u32 s2, 16\ns_cselect_b32 s%d, s%d, s%d\ns_cselect_b32 s%d, s%d, s%d" % (SRD_W, P_W1, P_W3, SRD_W+1, P_W1+1, P_W3+1))
    e("s_and_b32 s%d, s%d, 0xffff\ns_mov_b32 s%d, %d\ns_mov_b32 s%d, 0x20000" % (SRD_W+1, SRD_W+1, SRD_W+2, D*F*2, SRD_W+3))
    XA = 16; WB = 44; T = 224
    e("s_cmp_lg_u32 s%d, 7\ns_cbranch_scc1 L_SA" % sW)
    e("v_mov_b32 v10, 0\nv_mov_b32 v11, 0\nv_mov_b32 v12, 0\nv_mov_b32 v13, 0\nv_lshlrev_b32 v14, 8, v1\nv_lshlrev_b32 v15, 6, v1\nv_lshlrev_b32 v9, 11, v1")
    e("s_mul_i32 s%d, s2, %d\ns_add_u32 s%d, s%d, %d\ns_mul_i32 s%d, s2, 3584\ns_add_u32 s%d, s%d, %d" % (sT0, 14*256, sT0, sT0, WS_F2, sT1, sT1, sT1, WS_F3))
    e("s_lshl_b32 s%d, s2, 6\ns_add_u32 s%d, s%d, %d" % (sT2, sT2, sT2, WS_F1))
    e("s_mov_b64 exec, 0xff\nbuffer_store_dword v10, v9, %s, s%d offen sc1" % (srd4(SRD_WS), sT2))
    e("s_mov_b64 exec, 0x3fff\nbuffer_store_dwordx4 v[10:13], v14, %s, s%d offen sc1" % (srd4(SRD_WS), sT0))
    e("s_mov_b32 exec_lo, -1\ns_mov_b32 exec_hi, 0xffffff\nbuffer_store_dword v10, v15, %s, s%d offen sc1\ns_mov_b64 exec, -1" % (srd4(SRD_WS), sT1))
    g.label("L_SA")
    sc = " sc1" if OPT.get("tsc1") else ""
    if OPT.get("svt"):
        srd(g, SRD_K, P_K, S*D*2)
        srd(g, SRD_V, P_V, S*D*2)
        srd(g, SRD_SSM, P_SSM, D*S*2)
        srd(g, SRD_W2, P_W2, F*D*2)
        e("s_lshl_b32 s%d, s2, 3\ns_add_u32 s%d, s%d, s%d\ns_mul_i32 s%d, s%d, 7168\nv_lshlrev_b32 v8, 7, v1" % (sT3, sT3, sT3, sW, sT3, sT3))
        e("s_mov_b32 exec_hi, 0xffffff")
        e("buffer_load_dword v250, v8, %s, s%d offen%s\nbuffer_load_dword v251, v8, %s, s%d offen%s" % (srd4(SRD_K), sT3, sc, srd4(SRD_V), sT3, sc))
        e("s_mov_b64 exec, -1")
    e("v_lshrrev_b32 v2, 3, v0\nv_and_b32 v3, 7, v0\ns_lshl_b32 s%d, s2, 6\nv_add_u32 v4, s%d, v2\nv_mul_u32_u24 v4, 896, v4\nv_lshl_add_u32 v4, v3, 4, v4" % (sT0, sT0))
    for i in range(7):
        g.vmem("buffer_load_dwordx4 %s, v4, %s, 0 offen offset:%d" % (vr(XA+4*i, 4), srd4(SRD_X), 128*i), "A")
    lab = g.newlab("L_NFI")
    e("s_cmp_lg_u32 s%d, 7\ns_cbranch_scc1 %s" % (sW, lab))
    e("s_waitcnt vmcnt(7)")
    e("v_mov_b32 v5, 1\nv_mov_b32 v6, s2\nv_lshlrev_b32 v6, 2, v6\ns_mov_b64 exec, 1\nbuffer_store_dword v5, v6, %s, 0 offen offset:128 sc1\ns_mov_b64 exec, -1" % srd4(SRD_DBG))
    g.label(lab)
    e("v_and_b32 v5, 15, v0\nv_lshrrev_b32 v6, 4, v0\nv_mul_u32_u24 v6, 3584, v6\nv_lshl_add_u32 v6, v5, 4, v6")
    e("s_and_b32 s%d, s2, 15\ns_mul_i32 s%d, s%d, 224\nv_add_u32 v6, s%d, v6" % (sT0, sT0, sT0, sT0))
    e("v_cmp_gt_u32 vcc, 14, v5\nv_mov_b32 v7, 0x7000000\ns_nop 0\nv_cndmask_b32 v6, v7, v6, vcc")
    for i in range(14):
        e("s_mov_b32 s%d, %d" % (sT0, i*32*3584))
        g.vmem("buffer_load_dwordx4 %s, v6, %s, s%d offen" % (vr(WB+4*i, 4), srd4(SRD_W), sT0), "B%d" % (i // 4))
    def late_touch():
        e("s_mov_b32 exec_hi, 0xffffff")
        e("buffer_load_dword v250, v8, %s, s%d offen%s" % (srd4(SRD_SSM), sT3, sc))
        e("buffer_load_dword v251, v8, %s, s%d offen%s" % (srd4(SRD_W2), sT3, sc))
        e("s_mov_b64 exec, -1")
    stamp(g, 0, DEV)
    g.wait_vm("A")
    S1, S2 = T, T+1
    e("v_mov_b32 v%d, 0\nv_mov_b32 v%d, 0\nv_mov_b32 v%d, 0\nv_mov_b32 v%d, 0" % (T, T+1, T+2, T+3))
    for i in range(28):
        e("v_dot2c_f32_bf16 v%d, s%d, v%d\nv_dot2c_f32_bf16 v%d, v%d, v%d" % (T + 2*(i % 2), sONES, XA+i, T+1 + 2*(i % 2), XA+i, XA+i))
    e("s_nop 2\nv_add_f32 v%d, v%d, v%d\nv_add_f32 v%d, v%d, v%d\ns_nop 1" % (S1, S1, T+2, S2, S2, T+3))
    for dpp in ("quad_perm:[1,0,3,2]", "quad_perm:[2,3,0,1]", "row_half_mirror"):
        e("v_add_f32_dpp v%d, v%d, v%d %s row_mask:0xf bank_mask:0xf\nv_add_f32_dpp v%d, v%d, v%d %s row_mask:0xf bank_mask:0xf\ns_nop 1" % (S1, S1, S1, dpp, S2, S2, S2, dpp))
    b = T
    e("v_mul_f32 v%d, 0x3b124925, v%d\nv_mul_f32 v%d, 0x3b124925, v%d" % (b, b, b+1, b+1))
    e("v_fma_f32 v%d, -v%d, v%d, v%d\nv_max_f32 v%d, 0, v%d" % (b+1, b, b, b+1, b+1, b+1))
    e("v_cvt_pk_bf16_f32 v%d, -v%d, -v%d\nv_cvt_pk_bf16_f32 v%d, 0, v%d" % (b+4, b, b, b+1, b+1))
    e("v_add_f32 v%d, 0x3727c5ac, v%d\nv_cvt_pk_bf16_f32 v%d, 0, v%d" % (b+1, b+1, b+1, b+1))
    e("v_sqrt_f32 v%d, v%d\ns_nop 0\nv_cvt_pk_bf16_f32 v%d, 0, v%d\nv_rcp_f32 v%d, v%d\ns_nop 0" % (b+1, b+1, b+1, b+1, b+7, b+1))
    e("v_mul_f32 v%d, 0xbfb8aa3b, v%d\nv_mul_f32 v%d, v%d, v%d" % (b+5, b+7, b+6, b+1, b+1))
    e("v_lshlrev_b32 v4, 4, v2\nv_add_u32 v4, %d, v4\nv_cmp_eq_u32 vcc, 0, v3\ns_and_saveexec_b64 s[62:63], vcc" % LS)
    e("ds_write_b128 v4, %s\ns_mov_b64 exec, -1" % vr(b+4, 4))
    C = XA
    for k in range(8): e("v_mov_b32 v%d, 0" % (C+k))
    e("s_mov_b32 s%d, 0x3f80\ns_mov_b32 s%d, 0x3f800000" % (sT0, sT1))
    for i in range(14):
        if i % 4 == 0: g.wait_vm("B%d" % (i // 4))
        if i == 12 and OPT.get("svt"):
            lab = g.newlab("L_NLT")
            e("s_cmp_eq_u32 s%d, 0\ns_cbranch_scc1 %s" % (sW, lab))
            late_touch()
            g.label(lab)
        for p in range(4):
            e("v_dot2c_f32_bf16 v%d, s%d, v%d\nv_dot2c_f32_bf16 v%d, s%d, v%d" % (C+2*p, sT0, WB+4*i+p, C+2*p+1, sT1, WB+4*i+p))
    e("s_nop 3")
    for k in range(4): e("v_permlane32_swap_b32 v%d, v%d" % (C+k, C+k+4))
    for k in range(4): e("v_add_f32 v%d, v%d, v%d" % (C+k, C+k, C+k+4))
    e("s_nop 1")
    for k in range(2): e("v_permlane16_swap_b32 v%d, v%d" % (C+k, C+k+2))
    for k in range(2): e("v_add_f32 v%d, v%d, v%d" % (C+k, C+k, C+k+2))
    e("v_and_b32 v4, 15, v1\nv_lshrrev_b32 v5, 4, v1\nv_lshlrev_b32 v4, 5, v4\nv_lshl_add_u32 v4, v5, 3, v4\ns_lshl_b32 s%d, s%d, 9\ns_add_u32 s%d, s%d, %d\nv_add_u32 v4, s%d, v4" % (sT0, sW, sT0, sT0, LC, sT0))
    e("ds_write_b64 v4, %s" % vr(C, 2))
    e("s_waitcnt lgkmcnt(0)\ns_barrier")
    stamp(g, 1, DEV)
    e("s_cmp_lg_u32 s%d, 0\ns_cbranch_scc1 L_STD" % sW)
    e("v_lshlrev_b32 v4, 4, v1\nds_read_b128 v[16:19], v4 offset:%d\nv_lshlrev_b32 v5, 3, v1" % LS)
    for p in range(8):
        e("ds_read_b64 %s, v5 offset:%d" % (vr(20+2*p, 2), LC + 512*p))
    e("s_lshl_b32 s%d, s2, 10\ns_add_u32 s%d, s%d, %d\ns_waitcnt lgkmcnt(0)" % (sT0, sT0, sT0, WS_ST))
    e("buffer_store_dwordx4 v[16:19], v4, %s, s%d offen sc1" % (srd4(SRD_WS), sT0))
    for k in range(2):
        e("v_add_f32 v%d, v%d, v%d\nv_add_f32 v%d, v%d, v%d\nv_add_f32 v%d, v%d, v%d\nv_add_f32 v%d, v%d, v%d" %
          (20+k, 20+k, 22+k, 24+k, 24+k, 26+k, 28+k, 28+k, 30+k, 32+k, 32+k, 34+k))
        e("v_add_f32 v%d, v%d, v%d\nv_add_f32 v%d, v%d, v%d\nv_add_f32 v%d, v%d, v%d" % (20+k, 20+k, 24+k, 28+k, 28+k, 32+k, 20+k, 20+k, 28+k))
        e("v_cvt_pk_bf16_f32 v36, 0, v%d\nv_sub_f32 v37, v%d, v36\nv_cvt_pk_bf16_f32 v38, 0, v37\nv_sub_f32 v37, v37, v38" % (20+k, 20+k))
        e("v_cvt_pk_bf16_f32 v%d, v36, v38\nv_cvt_pk_bf16_f32 v%d, v37, 0" % (40+2*k, 41+2*k))
    e("s_mul_i32 s%d, s2, 896\ns_add_u32 s%d, s%d, %d\ns_mov_b32 exec_lo, -1\ns_mov_b32 exec_hi, 0xffffff" % (sT0, sT0, sT0, WS_CS))
    e("buffer_store_dwordx4 v[40:43], v4, %s, s%d offen sc1\ns_mov_b64 exec, -1" % (srd4(SRD_WS), sT0))
    e("s_waitcnt vmcnt(0)")
    e("s_mov_b32 s%d, %d\nv_mov_b32 v4, 1\nv_mov_b32 v5, s2\nv_lshlrev_b32 v5, 6, v5\ns_mov_b64 exec, 1\nbuffer_store_dword v4, v5, %s, s%d offen sc1\ns_mov_b64 exec, -1" % (sT0, WS_F1 + 7*2048, srd4(SRD_WS), sT0))
    e("s_waitcnt vmcnt(0)")
    g.label("L_STD")
    e("s_barrier")
    if not OPT.get("nowarm"):
        srd(g, SRD_SSM, P_SSM, D*S*2)
        srd(g, SRD_W2, P_W2, F*D*2)
        e("s_lshl_b32 s%d, s2, 3\ns_add_u32 s%d, s%d, s%d\ns_mul_i32 s%d, s%d, 7168\nv_lshlrev_b32 v8, 4, v1" % (sT3, sT3, sT3, sW, sT3, sT3))
        for q in range(7):
            e("s_add_u32 s%d, s%d, %d" % (sT0, sT3, 1024*q))
            e("buffer_load_dwordx4 %s, v8, %s, s%d offen" % (vr(100+8*q, 4), srd4(SRD_W2), sT0))
            e("buffer_load_dwordx4 %s, v8, %s, s%d offen" % (vr(104+8*q, 4), srd4(SRD_SSM), sT0))
    if DEV:
        stamp(g, 2, DEV)
        e("s_memrealtime s[62:63]\ns_waitcnt lgkmcnt(0)\ns_mov_b32 s101, s62")
        dump_stamps(g)

def dump_stamps(g):
    e = g.e
    e("s_lshl_b32 s%d, s2, 3\ns_add_u32 s%d, s%d, s%d\ns_lshl_b32 s%d, s%d, 6\ns_add_u32 s%d, s%d, %d" % (sT0, sT0, sT0, sW, sT0, sT0, sT0, sT0, WS_DBG))
    for i in range(12):
        e("v_mov_b32 v%d, s%d" % (2+i, sTS+i))
    e("v_mov_b32 v14, 0\ns_mov_b64 exec, 1")
    for i in range(3):
        e("buffer_store_dwordx4 %s, v14, %s, s%d offen offset:%d" % (vr(2+4*i, 4), srd4(SRD_WS), sT0, 16*i))
    e("s_waitcnt vmcnt(0)")

HEADER = open("cdna_kernels/%s.s.ref" % NAME).read().split("; @launch")[0]

def emit(g, path):
    out = [HEADER.rstrip("\n")]
    out.append("; @launch grid=(256,1,1) block=(512,1,1) lds=%d" % LDS_TOTAL)
    out.append('.amdgcn_target "amdgcn-amd-amdhsa--gfx950"\n.text\n.globl %s_kernel\n.p2align 8\n.type %s_kernel,@function' % (NAME, NAME))
    out += g.L
    out.append('.section .rodata,"a"\n.p2align 6\n.amdhsa_kernel %s_kernel\n  .amdhsa_next_free_vgpr 256\n  .amdhsa_next_free_sgpr 102\n  .amdhsa_accum_offset 256\n  .amdhsa_group_segment_fixed_size 0\n  .amdhsa_kernarg_size 104\n  .amdhsa_user_sgpr_count 2\n  .amdhsa_user_sgpr_kernarg_segment_ptr 1\n  .amdhsa_system_sgpr_workgroup_id_x 1\n.end_amdhsa_kernel' % NAME)
    open(path, "w").write("\n".join(out) + "\n")

if __name__ == "__main__":
    dev = "--final" not in sys.argv
    for a in sys.argv[2:]:
        if a.startswith("-D"):
            kv = a[2:].split("=")
            OPT[kv[0]] = kv[1] if len(kv) > 1 else 1
    g = build(DEV=dev)
    emit(g, sys.argv[1])
```
